```python
import torch

def _softmax(x, axis=-1):
    return torch.softmax(x, dim=axis)
def _gelu(x):
    return torch.nn.functional.gelu(x, approximate="tanh")
def _silu(x):
    return torch.nn.functional.silu(x)
def _sigmoid(x):
    return torch.sigmoid(x)
def _layernorm(x, axis=-1, eps=1e-5):
    m = x.mean(dim=axis, keepdim=True)
    v = x.var(dim=axis, keepdim=True, unbiased=False)
    return (x - m) / torch.sqrt(v + eps)
def _scatter_add(tgt, idx, src, axis=0):
    return tgt.clone().index_add_(axis, idx, src)
def _segment_sum(src, seg, n):
    out = torch.zeros((n,) + src.shape[1:], dtype=src.dtype)
    return out.index_add_(0, seg, src)
def _pad(x, pw):
    flat = tuple(v for pair in reversed(pw) for v in pair)
    return torch.nn.functional.pad(x, flat)

kernel_name = 'interleave_layers__grouped_kv_mqa__moe_arch_mod__prompt'

def setup_inputs():

    _w = (lambda a: (lambda t: t.to(torch.bfloat16) if t.is_floating_point() else t)(torch.as_tensor(a)))
    def _A_setup():
        B, S, D, H = 1, 2048, 640, 32
        Dh = D // H
        return {
            "x": _w((lambda *s: torch.randn(*s, dtype=torch.bfloat16) * 0.05)(B, S, D)),
            "wq": _w((lambda *s: torch.randn(*s, dtype=torch.bfloat16) * 0.05)(D, H * Dh)),
            "wk": _w((lambda *s: torch.randn(*s, dtype=torch.bfloat16) * 0.05)(D, Dh)),
            "wv": _w((lambda *s: torch.randn(*s, dtype=torch.bfloat16) * 0.05)(D, Dh)),
            "wo": _w((lambda *s: torch.randn(*s, dtype=torch.bfloat16) * 0.05)(H * Dh, D)),
        }
    _A_in = _A_setup()

    def _B_setup():
        B, S, D, F, C = 1, 2048, 640, 1728, 2
        return {
            "x": _w((lambda *s: torch.randn(*s, dtype=torch.bfloat16) * 0.05)(B, S, D)),
            "w_r": _w((lambda *s: torch.randn(*s, dtype=torch.bfloat16) * 0.05)(D)),
            "w_gate": _w((lambda *s: torch.randn(*s, dtype=torch.bfloat16) * 0.05)(D, F)),
            "w_up": _w((lambda *s: torch.randn(*s, dtype=torch.bfloat16) * 0.05)(D, F)),
            "w_down": _w((lambda *s: torch.randn(*s, dtype=torch.bfloat16) * 0.05)(F, D)),
        }
    _B_in = _B_setup()

    return {
        "A_x": _A_in["x"],
        "A_wq": _A_in["wq"],
        "A_wk": _A_in["wk"],
        "A_wv": _A_in["wv"],
        "A_wo": _A_in["wo"],
        "B_x": _B_in["x"],
        "B_w_r": _B_in["w_r"],
        "B_w_gate": _B_in["w_gate"],
        "B_w_up": _B_in["w_up"],
        "B_w_down": _B_in["w_down"],
    }

def reference(A_x, A_wq, A_wk, A_wv, A_wo, B_x, B_w_r, B_w_gate, B_w_up, B_w_down):
    def _A_ref(x, wq, wk, wv, wo):
        B, S, D = x.shape
        H = 32
        Dh = D // H
        q = (lambda x, *d: x.permute(*d))((x @ wq).reshape(B, S, H, Dh), 0, 2, 1, 3)
        k = x @ wk
        v = x @ wv
        scores = torch.einsum("bhqd,bkd->bhqk", q, k) * (Dh ** -0.5)
        p = _softmax(scores, axis=-1)
        o = torch.einsum("bhqk,bkd->bhqd", p, v)
        return (lambda x, *d: x.permute(*d))(o, 0, 2, 1, 3).reshape(B, S, H * Dh) @ wo

    def _B_ref(x, w_r, w_gate, w_up, w_down):
        B, S, D = x.shape
        C = 2
        r = x @ w_r
        idx = torch.argsort(-r, axis=-1)[:, :C]
        idx_e = (lambda x, n, axis: torch.repeat_interleave(x, n, dim=axis))(idx.reshape(B, C, 1), D, axis=2)
        x_sel = (lambda x, i, axis: torch.take_along_dim(x, i, dim=axis))(x, idx_e, axis=1)
        g = _silu(x_sel @ w_gate)
        u = x_sel @ w_up
        y = (g * u) @ w_down
        r_sel = _sigmoid((lambda x, i, axis: torch.take_along_dim(x, i, dim=axis))(r, idx, axis=1))
        y = y * r_sel.reshape(B, C, 1)
        b_off = (torch.arange(B) * S).reshape(B, 1)
        flat_idx = (idx + b_off).reshape(B * C)
        zero = (x * 0.0).reshape(B * S, D)
        upd = _scatter_add(zero, flat_idx, y.reshape(B * C, D), axis=0)
        return x + upd.reshape(B, S, D)

    x = A_x
    x = x + _A_ref(_layernorm(x, axis=-1), A_wq, A_wk, A_wv, A_wo)
    x = x + _B_ref(_layernorm(x, axis=-1), B_w_r, B_w_gate, B_w_up, B_w_down)
    x = x + _A_ref(_layernorm(x, axis=-1), A_wq, A_wk, A_wv, A_wo)
    x = x + _B_ref(_layernorm(x, axis=-1), B_w_r, B_w_gate, B_w_up, B_w_down)
    return x
```

```python
class Asm:
    def __init__(self):
        self.L = []
        self.uid = 0
    def __call__(self, s, *a):
        for line in (s % a if a else s).split("\n"):
            line = line.strip()
            if not line: continue
            if line.endswith(":") or line.startswith(";") or line.startswith("."):
                self.L.append(line)
            else:
                self.L.append("    " + line)
    def c(self, s): self.L.append("    ; " + s)
    def label(self, p="L"):
        self.uid += 1
        return f"{p}_{self.uid}"
    def text(self): return "\n".join(self.L) + "\n"
def v(i, n=1): return f"v{i}" if n == 1 else f"v[{i}:{i+n-1}]"
def a(i, n=1): return f"a{i}" if n == 1 else f"a[{i}:{i+n-1}]"
def s(i, n=1): return f"s{i}" if n == 1 else f"s[{i}:{i+n-1}]"
import struct
def f2u(x): return struct.unpack("<I", struct.pack("<f", x))[0]
```

```python
import sys, math
from asmlib import *
NAME = "interleave_layers__grouped_kv_mqa__moe_arch_mod__prompt"
STOP = int(sys.argv[2]) if len(sys.argv) > 2 else 99
E = Asm()
WS_FL = 0x1000; WS_KV = 0x40000; WS_STAT = 0xC0000; WS_R = 0x100000; WS_H = 0x104000
WS_OB = 0x200000; WS_Y = 0x700000; WS_X2 = 0xC00000
K2OFF = 0x10000; VOFF = 0x18000
OOB = 0x40000000
RING = 7168
QAREA = 131072; STAT1 = 143360; STAT2 = 144384; VT = 145408; STATP = 147456; TOP = 151552
LDS_BYTES = 155648
sW, sRB, sCB, sTAG, sLAY = 3, 4, 5, 6, 7
WS, XIN, XOUT, WG, T2 = 8, 12, 16, 20, 24
sRET, sWL, sI1, sI2, sK1, sK2 = 28, 29, 30, 31, 32, 33
sEX = 34
sKVO = 36
sT = 48
sKV, sSTAT, sR, sH, sOB, sY, sFL = 60, 61, 62, 63, 64, 65, 66
pX, pWQ, pWK, pWV, pWO, pWR, pG, pU, pD, pOUT, pDBG, pWS = 68, 70, 72, 74, 76, 80, 82, 84, 86, 88, 90, 92
vL, vJ, vH, vL16 = 1, 2, 3, 4
vS = 16; vP = 48; vQ1 = 64; vQ2 = 96
vX = 112; vWB = 152; vR = 208
vWo = 240; vTa = 245
aK1 = 0; aK2 = 64; aV = 96; aO = 224
CSC = math.log2(math.e) / math.sqrt(20.0)

def srd(d, p, size, add=None):
    if add is None:
        E(f"s_mov_b32 s{d}, s{p}\ns_mov_b32 s{d+1}, s{p+1}")
    else:
        E(f"s_add_u32 s{d}, s{p}, {add}\ns_addc_u32 s{d+1}, s{p+1}, 0")
    E(f"s_mov_b32 s{d+2}, {size}\ns_mov_b32 s{d+3}, 0x20000")

def stop(n):
    if STOP == n:
        E("s_waitcnt vmcnt(0) lgkmcnt(0)\ns_endpgm")

def signal(k, idx_sgpr):
    E(f"""s_lshl_b32 s{sT}, s{idx_sgpr}, 6
    s_add_u32 s{sT}, s{sT}, s{sFL}
    s_add_u32 s{sT}, s{sT}, {k*0x4000}
    v_mov_b32 v5, s{sTAG}
    v_mov_b32 v6, 0
    s_mov_b64 exec, 1
    buffer_store_dword v5, v6, s[{WS}:{WS+3}], s{sT} offen sc1
    s_mov_b64 exec, -1""")

def poll(k, nload, vaddr_setup):
    vaddr_setup()
    lp = E.label("Lpoll"); ld = E.label("Lpd")
    E(f"s_add_u32 s{sT}, s{sFL}, {k*0x4000}\ns_mov_b32 s{sT+1}, 0x200000")
    E(f"{lp}:")
    for i in range(nload):
        E(f"buffer_load_dword v{10+i}, v{6+i}, s[{WS}:{WS+3}], s{sT} offen sc1")
    E("s_waitcnt vmcnt(0)")
    for i in range(nload):
        E(f"v_xor_b32 v{10+i}, s{sTAG}, v{10+i}")
    for i in range(1, nload):
        E(f"v_or_b32 v10, v10, v{10+i}")
    E(f"""v_cmp_ne_u32 vcc, 0, v10
    s_sub_u32 s{sT+1}, s{sT+1}, 1
    s_cbranch_scc1 {ld}
    s_nop 2
    s_cbranch_vccnz {lp}
    {ld}:""")

def gbar(k, kind, sig=True):
    lw = E.label("Lbw")
    E(f"""s_waitcnt vmcnt(0) lgkmcnt(0)
    s_barrier
    s_cmp_lg_u32 s{sW}, 0
    s_cbranch_scc1 {lw}""")
    if kind == 'all':
        signal(k, 2)
        def st():
            E(f"v_lshlrev_b32 v6, 6, v{vL}\nv_add_u32 v7, 0x1000, v6\nv_add_u32 v8, 0x2000, v6\nv_add_u32 v9, 0x3000, v6")
        poll(k, 4, st)
    else:
        E(f"s_lshl_b32 s{sT+2}, s{sRB}, 2\ns_add_u32 s{sT+3}, s{sT+2}, s{sCB}")
        signal(k, sT+3)
        def st():
            E(f"v_and_b32 v6, 3, v{vL}\nv_add_u32 v6, s{sT+2}, v6\nv_lshlrev_b32 v6, 6, v6")
        poll(k, 1, st)
    E(f"{lw}:\ns_barrier")

def tr_addrs(delta_fn):
    E(f"""v_bfe_u32 v5, v{vL}, 2, 2
    v_lshl_add_u32 v5, v{vH}, 3, v5
    v_lshlrev_b32 v5, 6, v5
    v_add_u32 v5, s{sWL}, v5
    v_add_u32 v5, {RING}, v5
    v_bfe_u32 v6, v{vL}, 4, 1
    v_and_b32 v7, 3, v{vL}
    v_lshl_add_u32 v6, v6, 2, v7
    v_lshlrev_b32 v7, 2, v6""")
    for T in range(5):
        cst = 0
        for g in range(8):
            cst |= (delta_fn(8*T+g) + 1) << (4*g)
        E(f"""s_mov_b32 s{sT}, {cst}
        v_lshrrev_b32 v8, v7, s{sT}
        v_and_b32 v8, 15, v8
        v_add3_u32 v8, v8, v6, {8*T-1 if 8*T-1 <= 64 else 0}
        v_and_b32 v9, 7, v8
        v_lshrrev_b32 v8, 3, v8
        v_lshlrev_b32 v8, 10, v8
        v_lshl_add_u32 v8, v9, 3, v8
        v_add_u32 v{vTa+T}, v5, v8""")

dq = lambda G: (4 if G % 10 == 5 else (-1 if G % 10 > 5 else 0))
do = lambda G: [0, 1, -1, 0, 0, 1, -1, 0, 0, 0][G % 10]

E(f"""; @launch grid=(256,1,1) block=(256,1,1) lds={LDS_BYTES}
.amdgcn_target "amdgcn-amd-amdhsa--gfx950"
.text
.globl {NAME}_kernel
.p2align 8
.type {NAME}_kernel,@function
{NAME}_kernel:
s_cmp_ge_u32 s2, 256
s_cbranch_scc1 L_exit
s_load_dwordx16 s[68:83], s[0:1], 0
s_load_dwordx8 s[84:91], s[0:1], 64
s_load_dwordx2 s[92:93], s[0:1], 96
v_and_b32 v{vL}, 63, v0
v_lshrrev_b32 v5, 6, v0
v_and_b32 v{vJ}, 31, v0
v_bfe_u32 v{vH}, v0, 5, 1
v_readfirstlane_b32 s{sW}, v5
v_lshlrev_b32 v{vL16}, 4, v{vL}
s_and_b32 s{sT}, s2, 7
s_lshr_b32 s{sT+1}, s2, 5
s_lshl_b32 s{sT+1}, s{sT+1}, 3
s_or_b32 s{sRB}, s{sT}, s{sT+1}
s_bfe_u32 s{sCB}, s2, 0x20003
s_lshl_b32 s{sWL}, s{sW}, 15
s_mov_b32 s{sLAY}, 0
s_waitcnt lgkmcnt(0)
s_load_dword s{sTAG}, s[{pWS}:{pWS+1}], 0""")
srd(WS, pWS, 0x10000000)
srd(XIN, pX, 2621440)
srd(XOUT, pWS, 2621440, WS_X2)
E(f"""s_mov_b32 s{sKV}, {WS_KV}
s_mov_b32 s{sSTAT}, {WS_STAT}
s_mov_b32 s{sR}, {WS_R}
s_mov_b32 s{sH}, {WS_H}
s_mov_b32 s{sOB}, {WS_OB}
s_mov_b32 s{sY}, {WS_Y}
s_mov_b32 s{sFL}, {WS_FL}
s_waitcnt lgkmcnt(0)
s_add_u32 s{sTAG}, s{sTAG}, 1
L_layer:""")
E.c("P1: QKV projection")
lsk = E.label("Lno6")
E(f"""s_cmp_ge_u32 s{sCB}, 2
s_cbranch_scc1 {lsk}
s_cmp_eq_u32 s{sCB}, 0
s_cselect_b32 s{T2}, s{pWK}, s{pWV}
s_cselect_b32 s{T2+1}, s{pWK+1}, s{pWV+1}
s_mov_b32 s{T2+2}, 25600
s_mov_b32 s{T2+3}, 0x20000
s_mul_i32 s{sT}, s{sW}, 6400
v_add_u32 v5, s{sT}, v{vL16}
s_mov_b32 m0, s{sWL}
s_mov_b32 s{sT+1}, 4096""")
for i in range(4):
    E(f"buffer_load_dwordx4 v5, s[{T2}:{T2+3}], 0 offen offset:{i*1024} lds")
E(f"s_add_u32 m0, m0, 4096\ns_nop 0")
for i in range(3):
    E(f"buffer_load_dwordx4 v5, s[{T2}:{T2+3}], s{sT+1} offen offset:{i*1024} lds")
E(f"{lsk}:")
E(f"""s_mul_i32 s{sT}, s{sRB}, 40960
s_mul_i32 s{sT+1}, s{sW}, 320
s_add_u32 s{sT}, s{sT}, s{sT+1}
v_mul_u32_u24 v5, 1280, v{vJ}
v_lshl_add_u32 v5, v{vH}, 4, v5""")
for k in range(10):
    E(f"buffer_load_dwordx4 {v(vX+4*k,4)}, v5, s[{XIN}:{XIN+3}], s{sT} offen offset:{k*32} sc1")
srd(WG, pWQ, 819200)
E(f"""s_mul_i32 s{sT}, s{sW}, 204800
s_mul_i32 s{sT+1}, s{sCB}, 320
s_add_u32 s{sT}, s{sT}, s{sT+1}
v_lshrrev_b32 v5, 2, v{vL}
v_mul_u32_u24 v5, 1280, v5
v_and_b32 v6, 3, v{vL}
v_lshl_add_u32 v5, v6, 4, v5
v_add_u32 v{vWo}, s{sT}, v5""")
for i in range(1, 5):
    E(f"v_add_u32 v{vWo+i}, {20480*i}, v{vWo}")
tr_addrs(dq)
E(f"""v_bfe_u32 v5, v{vL}, 2, 2
v_lshl_add_u32 v5, v{vH}, 3, v5
v_mul_u32_u24 v5, 40, v5
v_min_u32 v6, 4, v6
v_lshl_add_u32 v5, v6, 3, v5
v_add_u32 v{vTa+5}, s{sWL}, v5
s_mov_b32 s{sRET}, 0
L_gemm:""")
def wloads(slot, soff):
    for T in range(5):
        if T == 0:
            E(f"s_add_u32 m0, s{sWL}, {RING + slot*5120}")
        else:
            E(f"s_add_u32 m0, m0, 960")
        E("s_nop 0")
        E(f"buffer_load_dwordx4 v{vWo+slot}, s[{WG}:{WG+3}], {soff} offen offset:{64*T} lds")
E(f"s_mov_b32 s{sT+4}, 102400")
for k in range(5): wloads(k, "0")
lnc = E.label("Lnoc")
E(f"""s_waitcnt vmcnt(25)
s_cmp_lg_u32 s{sRET}, 0
s_cbranch_scc1 {lnc}""")
E.c("centering (LayerNorm mean) + variance partials")
E(f"v_mov_b32 v7, 0x3f803f80\nv_mov_b32 v5, 0\nv_mov_b32 v6, 0")
for i in range(40):
    E(f"v_dot2_f32_bf16 v{5+i%2}, v{vX+i}, v7, v{5+i%2}")
E(f"""s_lshl_b32 s{sT}, s{sW}, 3
v_lshlrev_b32 v8, 5, v{vJ}
v_lshl_add_u32 v9, v{vH}, 2, v8
v_add_u32 v9, s{sT}, v9
v_add_u32 v9, {STAT1}, v9
v_add_f32 v5, v5, v6
v_add_u32 v8, {STAT1}, v8
ds_write_b32 v9, v5
s_waitcnt lgkmcnt(0)
s_barrier
ds_read_b128 v[12:15], v8
ds_read_b128 v[16:19], v8 offset:16
s_waitcnt lgkmcnt(0)
v_add_f32 v12, v12, v13
v_add_f32 v14, v14, v15
v_add_f32 v16, v16, v17
v_add_f32 v18, v18, v19
v_add_f32 v12, v12, v14
v_add_f32 v16, v16, v18
v_add_f32 v12, v12, v16
v_mul_f32 v12, {f2u(1.0/640)}, v12
v_mov_b32 v5, 0
v_mov_b32 v6, 0""")
for i in range(40):
    t = 16 + 2*(i % 4)
    E(f"""v_lshlrev_b32 v{t}, 16, v{vX+i}
    v_and_b32 v{t+1}, 0xffff0000, v{vX+i}
    v_sub_f32 v{t}, v{t}, v12
    v_sub_f32 v{t+1}, v{t+1}, v12
    v_cvt_pk_bf16_f32 v{vX+i}, v{t}, v{t+1}""")
    if i > 0:
        E(f"v_dot2_f32_bf16 v{5+i%2}, v{vX+i-1}, v{vX+i-1}, v{5+i%2}")
E(f"""v_dot2_f32_bf16 v5, v{vX+39}, v{vX+39}, v5
s_nop 2
v_add_f32 v5, v5, v6
ds_write_b32 v9, v5 offset:{STAT2-STAT1}
{lnc}:""")
def mfmas(k):
    b = vWB + 24*(k % 2)
    for T in range(6):
        c = "0" if k == 0 else a(16*T, 16)
        E(f"v_mfma_f32_32x32x16_bf16 {a(16*T,16)}, {v(b+4*T,4)}, {v(vX+4*k,4)}, {c}")
for k in range(10):
    n = 20 if k <= 5 else 20 - 5*(k-5)
    E(f"s_waitcnt vmcnt({n})")
    b = vWB + 24*(k % 2)
    for T in range(5):
        for u in range(2):
            E(f"ds_read_b64_tr_b16 {v(b+4*T+2*u,2)}, v{vTa+T} offset:{(k%5)*5120 + u*256}")
    for u in range(2):
        E(f"ds_read_b64_tr_b16 {v(b+20+2*u,2)}, v{vTa+5} offset:{k*640 + u*160}")
    if k > 0: mfmas(k-1)
    E("s_waitcnt lgkmcnt(0)")
    if k < 5: wloads(k, f"s{sT+4}")
mfmas(9)
E(f"""v_add_u32 v5, s{sWL}, v{vL16}
s_mul_i32 s{sT}, s{sW}, 5120
s_lshl_b32 s{sT+1}, s{sW}, 10
v_add_u32 v6, s{sT}, v{vL16}
v_add_u32 v7, 0x10000, v6
v_add_u32 v8, s{sT+1}, v{vL16}
v_add_u32 v9, 0x10000, v8
s_nop 7
s_nop 3""")
for q in range(24):
    E(f"ds_write_b128 v5, {a(4*q,4)} offset:{q*1024}")
E("s_waitcnt lgkmcnt(0)\ns_barrier")
for wr in range(4):
    for qi in range(6):
        ad = (6 if wr < 2 else 7) if qi < 5 else (8 if wr < 2 else 9)
        off = (wr % 2)*32768 + (qi*1024 if qi < 5 else 20480)
        E(f"ds_read_b128 {v(vX+(wr*6+qi)*4,4)}, v{ad} offset:{off}")
E("s_waitcnt lgkmcnt(12)")
for i in range(12):
    E(f"v_pk_add_f32 {v(vR+2*i,2)}, {v(vX+2*i,2)}, {v(vX+24+2*i,2)}")
E("s_waitcnt lgkmcnt(0)")
for i in range(12):
    E(f"v_pk_add_f32 {v(vX+48+2*i,2)}, {v(vX+48+2*i,2)}, {v(vX+72+2*i,2)}")
for i in range(12):
    E(f"v_pk_add_f32 {v(vR+2*i,2)}, {v(vR+2*i,2)}, {v(vX+48+2*i,2)}")
E(f"s_cmp_lg_u32 s{sRET}, 0\ns_cbranch_scc1 L_ret_out")
E(f"""v_lshlrev_b32 v8, 5, v{vJ}
v_add_u32 v8, {STAT2}, v8
ds_read_b128 v[12:15], v8
ds_read_b128 v[16:19], v8 offset:16
v_add_u32 v20, -1, v{vH}
v_sub_u32 v21, 0, v{vH}
s_waitcnt lgkmcnt(0)
v_add_f32 v12, v12, v13
v_add_f32 v14, v14, v15
v_add_f32 v16, v16, v17
v_add_f32 v18, v18, v19
v_add_f32 v12, v12, v14
v_add_f32 v16, v16, v18
v_add_f32 v12, v12, v16
v_mov_b32 v13, {f2u(1e-5)}
v_fmac_f32 v13, {f2u(1.0/640)}, v12
v_rsq_f32 v13, v13
s_nop 0
v_mul_f32 v14, {f2u(CSC)}, v13""")
for i in range(20):
    E(f"v_mul_f32 v{vX+i}, v{vR+i}, v14")
for i in range(4):
    E(f"v_mul_f32 v{vX+20+i}, v{vR+20+i}, v13")
Q = 24
for i in range(4): E(f"v_cvt_pk_bf16_f32 v{Q+i}, v{vX+2*i}, v{vX+2*i+1}")
for i in range(4): E(f"v_cvt_pk_bf16_f32 v{Q+4+i}, v{vX+12+2*i}, v{vX+13+2*i}")
for i in range(2): E(f"v_cvt_pk_bf16_f32 v{Q+12+i}, v{vX+8+2*i}, v{vX+9+2*i}")
E(f"""v_and_b32 v{Q+8}, v{Q+12}, v20
v_and_b32 v{Q+9}, v{Q+13}, v20
v_and_b32 v{Q+10}, v{Q+12}, v21
v_and_b32 v{Q+11}, v{Q+13}, v21
s_lshl_b32 s{sT}, s{sW}, 11
s_lshl_b32 s{sT+1}, s{sW}, 10
v_add_u32 v5, s{sT}, v{vL16}
v_add_u32 v6, s{sT+1}, v{vL16}
v_add_u32 v5, {QAREA}, v5
v_add_u32 v6, {QAREA+8192}, v6
ds_write_b128 v5, {v(Q,4)}
ds_write_b128 v5, {v(Q+4,4)} offset:1024
ds_write_b128 v6, {v(Q+8,4)}""")
l6 = E.label("L6d"); lv = E.label("L6v"); ln2 = E.label("L6n")
E(f"""s_cmp_ge_u32 s{sCB}, 2
s_cbranch_scc1 {l6}
s_cmp_eq_u32 s{sW}, 3
s_cbranch_scc1 {l6}
s_cmp_eq_u32 s{sCB}, 1
s_cbranch_scc1 {lv}
v_cvt_pk_bf16_f32 v{Q+14}, v{vX+20}, v{vX+21}
v_cvt_pk_bf16_f32 v{Q+15}, v{vX+22}, v{vX+23}
s_lshl_b32 s{sT}, s{sRB}, 10
s_lshl_b32 s{sT+1}, s{sW}, 3
s_add_u32 s{sT}, s{sT}, s{sT+1}
s_lshr_b32 s{sT+1}, s{sRB}, 1
s_lshl_b32 s{sT+1}, s{sT+1}, 10
s_and_b32 s{sT+2}, s{sRB}, 1
s_lshl_b32 s{sT+2}, s{sT+2}, 3
s_add_u32 s{sT+1}, s{sT+1}, s{sT+2}
s_add_u32 s{sT+1}, s{sT+1}, {K2OFF}
s_cmp_eq_u32 s{sW}, 2
s_cselect_b32 s{sT}, s{sT+1}, s{sT}
s_add_u32 s{sT}, s{sT}, s{sKV}
buffer_store_dwordx2 {v(Q+14,2)}, v{vL16}, s[{WS}:{WS+3}], s{sT} offen sc1
s_branch {l6}
{lv}:
s_cmp_lg_u32 s{sW}, 2
s_cbranch_scc1 {ln2}
v_cmp_eq_u32 vcc, 1, v{vH}
s_nop 1
v_cndmask_b32 v{vX+20}, v{vX+20}, 1.0, vcc
{ln2}:
v_cvt_pk_bf16_f32 v{Q+14}, v{vX+20}, v{vX+21}
v_cvt_pk_bf16_f32 v{Q+15}, v{vX+22}, v{vX+23}
v_and_b32 v5, 0x13, v{vJ}
v_bfe_u32 v6, v{vJ}, 2, 1
v_lshl_add_u32 v5, v6, 3, v5
v_bfe_u32 v6, v{vJ}, 3, 1
v_lshl_add_u32 v5, v6, 2, v5
v_lshlrev_b32 v5, 1, v5
v_lshl_add_u32 v5, v{vH}, 8, v5
s_lshl_b32 s{sT}, s{sW}, 9
s_add_u32 s{sT}, s{sT}, {VT}
v_add_u32 v5, s{sT}, v5
ds_write_b16 v5, v{Q+14}
ds_write_b16_d16_hi v5, v{Q+14} offset:64
ds_write_b16 v5, v{Q+15} offset:128
ds_write_b16_d16_hi v5, v{Q+15} offset:192
{l6}:
s_waitcnt lgkmcnt(0)
s_barrier""")
E(f"""v_mul_u32_u24 v15, 336, v{vH}
v_lshl_add_u32 v15, v{vJ}, 4, v15
v_mov_b32 v5, {OOB}
v_cmp_lt_u32 vcc, 20, v{vJ}
s_nop 1
v_cndmask_b32 v15, v15, v5, vcc""")
lnv = E.label("Lnv")
E(f"""s_cmp_lg_u32 s{sCB}, 1
s_cbranch_scc1 {lnv}
s_cmp_ge_u32 s{sW}, 2
s_cbranch_scc1 {lnv}
s_lshl_b32 s{sT}, s{sW}, 5
s_add_u32 s{sT}, s{sT}, {VT}
v_lshlrev_b32 v5, 6, v{vJ}
v_lshl_add_u32 v5, v{vH}, 4, v5
v_add_u32 v5, s{sT}, v5
ds_read_b128 v[8:11], v5
s_mul_i32 s{sT}, s{sRB}, 1344
s_mul_i32 s{sT+1}, s{sW}, 672
s_add_u32 s{sT}, s{sT}, s{sT+1}
s_add_u32 s{sT}, s{sT}, s{sKV}
s_add_u32 s{sT}, s{sT}, {VOFF}
s_waitcnt lgkmcnt(0)
buffer_store_dwordx4 v[8:11], v15, s[{WS}:{WS+3}], s{sT} offen sc1
{lnv}:
v_add_u32 v5, {QAREA}, v{vL16}""")
for i in range(12):
    E(f"ds_read_b128 {v(vQ1+4*i,4)}, v5 offset:{i*1024}")
E(f"""s_lshl_b32 s{sT}, s{sW}, 14
s_add_u32 s{sKVO}, s{sT}, s{sKV}
s_lshl_b32 s{sT}, s{sW}, 13
s_add_u32 s{sT}, s{sT}, s{sKV}
s_add_u32 s{sKVO+4}, s{sT}, {K2OFF}
s_mul_i32 s{sT}, s{sW}, {16*1344}
s_add_u32 s{sT}, s{sT}, s{sKV}
s_add_u32 s{sKVO+6}, s{sT}, {VOFF}""")
for i in range(1, 4): E(f"s_add_u32 s{sKVO+i}, s{sKVO}, {4096*i}")
E(f"s_add_u32 s{sKVO+5}, s{sKVO+4}, 4096")
for i in range(1, 6): E(f"s_add_u32 s{sKVO+6+i}, s{sKVO+6}, {3*1344*i}")
gbar(0, 'all')
lne = E.label("Lne")
E(f"""s_or_b32 s{sT}, s2, s{sW}
s_cmp_lg_u32 s{sT}, 0
s_cbranch_scc1 {lne}
v_mov_b32 v5, s{sTAG}
v_mov_b32 v6, 0
s_mov_b64 exec, 1
buffer_store_dword v5, v6, s[{WS}:{WS+3}], 0 offen sc1
s_mov_b64 exec, -1
s_waitcnt vmcnt(0)
{lne}:""")
stop(1)
def kvloads(t):
    L = []
    if t % 2 == 0:
        p = t // 2
        L.append(f"buffer_load_dwordx4 {a(aK2+4*p,4)}, v{vL16}, s[{WS}:{WS+3}], s{sKVO+4+p//4} offen offset:{(p%4)*1024} sc1")
    L.append(f"buffer_load_dwordx4 {a(aK1+4*t,4)}, v{vL16}, s[{WS}:{WS+3}], s{sKVO+t//4} offen offset:{(t%4)*1024} sc1")
    for m in range(2):
        L.append(f"buffer_load_dwordx4 {a(aV+8*t+4*m,4)}, v15, s[{WS}:{WS+3}], s{sKVO+6+t//3} offen offset:{(t%3)*1344+m*672} sc1")
    return L
def qk(i):
    r, t, q = i // 32, (i % 32)//2, i % 2
    hd = 2*r + q; S = vS + 16*(i % 2)
    return [f"v_mfma_f32_32x32x16_bf16 {v(S,16)}, {a(aK1+4*t,4)}, {v(vQ1+4*hd,4)}, 0",
            f"v_mfma_f32_32x32x8_bf16 {v(S,16)}, {a(aK2+2*t,2)}, {v(vQ2+2*hd,2)}, {v(S,16)}"]
def pv(i):
    r, t, q = i // 32, (i % 32)//2, i % 2
    P = vP + 8*(i % 2); O = a(aO+16*q, 16)
    return [f"v_mfma_f32_32x32x16_bf16 {O}, {a(aV+8*t,4)}, {v(P,4)}, {'0' if t == 0 else O}",
            f"v_mfma_f32_32x32x16_bf16 {O}, {a(aV+8*t+4,4)}, {v(P+4,4)}, {O}"]
def sm(i):
    S = vS + 16*(i % 2); P = vP + 8*(i % 2); va = []
    for k in range(8):
        va += [f"v_exp_f32 v{S+2*k}, v{S+2*k}", f"v_exp_f32 v{S+2*k+1}, v{S+2*k+1}"]
        if k > 0: va.append(f"v_cvt_pk_bf16_f32 v{P+k-1}, v{S+2*k-2}, v{S+2*k-1}")
    va.append(f"v_cvt_pk_bf16_f32 v{P+7}, v{S+14}, v{S+15}")
    return va
def owrite(qt):
    return [f"ds_write_b128 v14, {a(aO+16*(qt%2)+4*g,4)} offset:{qt*3072+g*1024}" for g in range(3)]
nld = lambda u: 4 if u % 2 == 0 else 3
E.c("attention: softmax uses the constant stand-in 0 for the row max; checked below (fallback to true max)")
E(f"v_add_u32 v14, s{sWL}, v{vL16}")
for t in range(4):
    for x in kvloads(t): E(x)
E(f"s_waitcnt lgkmcnt(0)\ns_waitcnt vmcnt({sum(nld(u) for u in (1,2,3))})")
for x in qk(0): E(x + "\ns_nop 7\ns_nop 3")
for i in range(128):
    m = [None]*4
    if i < 127: m[0], m[2] = qk(i+1)
    if i > 0: m[1], m[3] = pv(i-1)
    va = sm(i)
    pre = []; mid = []
    if i < 32:
        if i % 2 == 0 and i//2 + 4 < 16: mid += kvloads(i//2 + 4)
        if i % 2 == 1 and (i+1)//2 < 16:
            t = (i+1)//2
            pre.append(f"s_waitcnt vmcnt({sum(nld(u) for u in range(t+1, min(t+3,15)+1))})")
    if i >= 32 and i % 32 == 0: mid += owrite(2*(i//32) - 2)
    if i >= 32 and i % 32 == 1: mid += owrite(2*(i//32) - 1)
    for x in pre: E(x)
    for jx in range(4):
        if m[jx]: E(m[jx])
        for x in va[6*jx:6*jx+6]: E(x)
        if jx == 1:
            for x in mid: E(x)
E("s_nop 1")
for x in pv(127): E(x)
E("s_nop 7\ns_nop 3")
for x in owrite(6): E(x)
E("s_nop 7")
for x in owrite(7): E(x)
E(f"""s_mul_i32 s{sT}, s{sW}, 6144
v_add_u32 v6, s{sT}, v{vL16}
v_add_u32 v7, 0x10000, v6
s_waitcnt lgkmcnt(0)
s_barrier""")
for wr in range(4):
    for qi in range(6):
        E(f"ds_read_b128 {v(vX+(wr*6+qi)*4,4)}, v{6 if wr < 2 else 7} offset:{(wr%2)*32768 + qi*1024}")
E("s_waitcnt lgkmcnt(12)")
for i in range(12):
    E(f"v_pk_add_f32 {v(vR+2*i,2)}, {v(vX+2*i,2)}, {v(vX+24+2*i,2)}")
E("s_waitcnt lgkmcnt(0)")
for i in range(12):
    E(f"v_pk_add_f32 {v(vX+48+2*i,2)}, {v(vX+48+2*i,2)}, {v(vX+72+2*i,2)}")
for i in range(12):
    E(f"v_pk_add_f32 {v(vR+2*i,2)}, {v(vR+2*i,2)}, {v(vX+48+2*i,2)}")
E(f"""v_mov_b32 v5, v{vR+8}
v_mov_b32 v6, v{vR+8}
v_mov_b32 v7, v{vR+20}
v_mov_b32 v8, v{vR+20}
s_nop 1
v_permlane32_swap_b32 v5, v6
v_permlane32_swap_b32 v7, v8
s_nop 1
v_rcp_f32 v6, v6
v_rcp_f32 v8, v8
s_nop 0""")
for i in range(12): E(f"v_mul_f32 v{vR+i}, v{vR+i}, v6")
for i in range(12): E(f"v_mul_f32 v{vR+12+i}, v{vR+12+i}, v8")
for i in range(4): E(f"v_cvt_pk_bf16_f32 v{16+i}, v{vR+2*i}, v{vR+2*i+1}")
for i in range(4): E(f"v_cvt_pk_bf16_f32 v{20+i}, v{vR+12+2*i}, v{vR+13+2*i}")
for i in range(2): E(f"v_cvt_pk_bf16_f32 v{24+i}, v{vR+8+2*i}, v{vR+9+2*i}")
for i in range(2): E(f"v_cvt_pk_bf16_f32 v{26+i}, v{vR+20+2*i}, v{vR+21+2*i}")
E(f"""s_mul_i32 s{sT}, s{sRB}, 40960
s_lshl_b32 s{sT+1}, s{sCB}, 2
s_add_u32 s{sT+1}, s{sT+1}, s{sW}
s_mul_i32 s{sT+1}, s{sT+1}, 2560
s_add_u32 s{sT}, s{sT}, s{sOB}
s_add_u32 s{sT+1}, s{sT+1}, s{sT}
v_lshlrev_b32 v5, 4, v{vJ}
v_lshl_add_u32 v6, v{vH}, 9, v5
v_lshl_add_u32 v5, v{vH}, 30, v5
buffer_store_dwordx4 v[16:19], v6, s[{WS}:{WS+3}], s{sT+1} offen sc1
buffer_store_dwordx4 v[20:23], v6, s[{WS}:{WS+3}], s{sT+1} offen offset:1024 sc1
buffer_store_dwordx4 v[24:27], v5, s[{WS}:{WS+3}], s{sT+1} offen offset:2048 sc1""")
gbar(1, 'cluster')
stop(2)
E.c("out projection")
E(f"""s_mul_i32 s{sT}, s{sRB}, 40960
s_mul_i32 s{sT+1}, s{sW}, 10240
s_add_u32 s{sT}, s{sT}, s{sOB}
s_add_u32 s{sT}, s{sT}, s{sT+1}
s_add_u32 s{sT+1}, s{sT}, 4096
s_add_u32 s{sT+2}, s{sT}, 8192""")
for k in range(10):
    E(f"buffer_load_dwordx4 {v(vX+4*k,4)}, v{vL16}, s[{WS}:{WS+3}], s{sT+k//4} offen offset:{(k%4)*1024} sc1")
srd(WG, pWO, 819200)
E(f"""s_mul_i32 s{sT}, s{sW}, 204800
s_mul_i32 s{sT+1}, s{sCB}, 320
s_add_u32 s{sT}, s{sT}, s{sT+1}
v_and_b32 v6, 3, v{vL}
v_lshlrev_b32 v6, 4, v6
v_add_u32 v6, s{sT}, v6
v_bfe_u32 v7, v{vL}, 2, 2
v_bfe_u32 v8, v{vL}, 4, 1
v_cmp_eq_u32 vcc, 1, v{vH}""")
for s5 in range(5):
    bs = []; gs = []
    for hh in range(2):
        c = 2*s5 + hh
        bs.append(40*(c//5) + [0, 4, 20, 24, 16][c % 5]); gs.append(20 if c % 5 == 4 else 8)
    E(f"""v_mov_b32 v9, {gs[0]}
    v_mov_b32 v10, {bs[0]}
    v_cndmask_b32 v9, v9, {gs[1]}, vcc
    v_mov_b32 v11, {bs[1]}
    v_cndmask_b32 v10, v10, v11, vcc
    v_mad_u32_u24 v9, v9, v8, v7
    v_add_u32 v9, v9, v10
    v_mul_u32_u24 v9, 1280, v9
    v_add_u32 v{vWo+s5}, v9, v6""")
tr_addrs(do)
E(f"""s_mov_b32 s{sRET}, 1
s_branch L_gemm
L_ret_out:""")
E(f"""s_mul_i32 s{sT}, s{sCB}, 320
s_mul_i32 s{sT+1}, s{sW}, 80
s_add_u32 s{sT+5}, s{sT}, s{sT+1}
s_mul_i32 s{sT+1}, s{sRB}, 40960
s_add_u32 s{sT+6}, s{sT+5}, s{sT+1}
v_mul_u32_u24 v12, 1280, v{vJ}
v_lshl_add_u32 v13, v{vH}, 3, v12
v_lshl_add_u32 v12, v{vH}, 4, v12
v_lshlrev_b32 v10, 4, v{vH}
v_lshlrev_b32 v11, 3, v{vH}""")
srd(T2, pWR, 1280)
E(f"""buffer_load_dwordx4 v[16:19], v12, s[{XIN}:{XIN+3}], s{sT+6} offen sc1
buffer_load_dwordx4 v[20:23], v12, s[{XIN}:{XIN+3}], s{sT+6} offen offset:32 sc1
buffer_load_dwordx2 v[24:25], v13, s[{XIN}:{XIN+3}], s{sT+6} offen offset:64 sc1
buffer_load_dwordx4 v[28:31], v10, s[{T2}:{T2+3}], s{sT+5} offen
buffer_load_dwordx4 v[32:35], v10, s[{T2}:{T2+3}], s{sT+5} offen offset:32
buffer_load_dwordx2 v[36:37], v11, s[{T2}:{T2+3}], s{sT+5} offen offset:64
s_waitcnt vmcnt(0)""")
for i in range(10):
    E(f"""v_lshlrev_b32 v5, 16, v{16+i}
    v_and_b32 v6, 0xffff0000, v{16+i}
    v_add_f32 v5, v5, v{vR+2*i}
    v_add_f32 v6, v6, v{vR+2*i+1}
    v_cvt_pk_bf16_f32 v{16+i}, v5, v6""")
E("v_mov_b32 v9, 0x3f803f80\nv_mov_b32 v40, 0\nv_mov_b32 v41, 0\nv_mov_b32 v42, 0\nv_mov_b32 v43, 0")
for i in range(10):
    E(f"""v_dot2_f32_bf16 v40, v{16+i}, v9, v40
    v_dot2_f32_bf16 v41, v{16+i}, v{16+i}, v41
    v_dot2_f32_bf16 v42, v{16+i}, v{28+i}, v42
    v_dot2_f32_bf16 v43, v{28+i}, v9, v43""")
lns = E.label("Lns")
E(f"""s_lshl_b32 s{sT}, s{sW}, 5
s_add_u32 s{sT}, s{sT}, {STATP}
v_lshlrev_b32 v6, 7, v{vJ}
v_lshl_add_u32 v5, v{vH}, 4, v6
v_add_u32 v5, s{sT}, v5
v_add_u32 v6, {STATP}, v6
ds_write_b128 v5, v[40:43]
s_waitcnt lgkmcnt(0)
s_barrier
s_cmp_lg_u32 s{sW}, 0
s_cbranch_scc1 {lns}""")
for i in range(8): E(f"ds_read_b128 {v(vX+4*i,4)}, v6 offset:{16*i}")
E("s_waitcnt lgkmcnt(0)")
for st in (16, 8, 4):
    for i in range(0, st, 2): E(f"v_pk_add_f32 {v(vX+i,2)}, {v(vX+i,2)}, {v(vX+st+i,2)}")
E(f"""s_lshl_b32 s{sT}, s{sRB}, 2
s_add_u32 s{sT}, s{sT}, s{sCB}
s_lshl_b32 s{sT}, s{sT}, 9
s_add_u32 s{sT}, s{sT}, s{sSTAT}
v_lshlrev_b32 v5, 4, v{vJ}
v_lshl_add_u32 v5, v{vH}, 30, v5
buffer_store_dwordx4 {v(vX,4)}, v5, s[{WS}:{WS+3}], s{sT} offen sc1
{lns}:""")
gbar(2, 'cluster')
E(f"""s_lshl_b32 s{sT}, s{sRB}, 11
s_add_u32 s{sT}, s{sT}, s{sSTAT}
v_lshlrev_b32 v5, 4, v{vJ}""")
for i in range(4): E(f"buffer_load_dwordx4 {v(vX+4*i,4)}, v5, s[{WS}:{WS+3}], s{sT} offen offset:{512*i} sc1")
E("s_waitcnt vmcnt(0)")
for st in (8, 4):
    for i in range(0, st, 2): E(f"v_pk_add_f32 {v(vX+i,2)}, {v(vX+i,2)}, {v(vX+st+i,2)}")
E(f"""v_mul_f32 v5, {f2u(1.0/640)}, v{vX}
v_mul_f32 v6, {f2u(1.0/640)}, v{vX+1}
v_fma_f32 v6, -v5, v5, v6
v_max_f32 v6, 0, v6
v_add_f32 v6, {f2u(1e-5)}, v6
v_rsq_f32 v6, v6
v_fma_f32 v7, -v5, v{vX+3}, v{vX+2}
v_mul_f32 v7, v7, v6""")
for i in range(10):
    E(f"""v_lshlrev_b32 v8, 16, v{16+i}
    v_and_b32 v9, 0xffff0000, v{16+i}
    v_sub_f32 v10, v8, v5
    v_sub_f32 v11, v9, v5
    v_mul_f32 v10, v10, v6
    v_mul_f32 v11, v11, v6
    v_cvt_pk_bf16_f32 v{28+i}, v10, v11
    v_add_f32 v8, v8, v10
    v_add_f32 v9, v9, v11
    v_cvt_pk_bf16_f32 v{16+i}, v8, v9""")
lnr = E.label("Lnr")
E(f"""s_add_u32 s{sT}, s{sT+6}, s{sY}
buffer_store_dwordx4 v[16:19], v12, s[{XOUT}:{XOUT+3}], s{sT+6} offen sc1
buffer_store_dwordx4 v[20:23], v12, s[{XOUT}:{XOUT+3}], s{sT+6} offen offset:32 sc1
buffer_store_dwordx2 v[24:25], v13, s[{XOUT}:{XOUT+3}], s{sT+6} offen offset:64 sc1
buffer_store_dwordx4 v[28:31], v12, s[{WS}:{WS+3}], s{sT} offen sc1
buffer_store_dwordx4 v[32:35], v12, s[{WS}:{WS+3}], s{sT} offen offset:32 sc1
buffer_store_dwordx2 v[36:37], v13, s[{WS}:{WS+3}], s{sT} offen offset:64 sc1
s_or_b32 s{sT}, s{sCB}, s{sW}
s_cmp_lg_u32 s{sT}, 0
s_cbranch_scc1 {lnr}
s_lshl_b32 s{sT}, s{sRB}, 7
s_add_u32 s{sT}, s{sT}, s{sR}
v_lshlrev_b32 v5, 2, v{vJ}
v_lshl_add_u32 v5, v{vH}, 30, v5
buffer_store_dword v7, v5, s[{WS}:{WS+3}], s{sT} offen sc1
{lnr}:""")
gbar(3, 'all')
stop(3)
E.c("top-2 router selection")
E(f"""s_lshl_b32 s{sT}, s{sW}, 11
s_add_u32 s{sT}, s{sT}, s{sR}
buffer_load_dwordx4 v[16:19], v{vL16}, s[{WS}:{WS+3}], s{sT} offen sc1
buffer_load_dwordx4 v[20:23], v{vL16}, s[{WS}:{WS+3}], s{sT} offen offset:1024 sc1
s_lshl_b32 s{sT}, s{sW}, 9
s_sub_u32 s{sT}, 2047, s{sT}
v_lshlrev_b32 v5, 2, v{vL}
v_sub_u32 v5, s{sT}, v5
s_mov_b32 s{sT+1}, 0xfffff800
v_mov_b32 v8, 0
v_mov_b32 v9, 0
s_waitcnt vmcnt(0)""")
for i in range(8):
    off = (i // 4)*256 + i % 4
    E(f"""v_ashrrev_i32 v6, 31, v{16+i}
    v_or_b32 v6, 0x80000000, v6
    v_xor_b32 v6, v6, v{16+i}
    v_subrev_u32 v7, {off}, v5
    v_and_or_b32 v6, v6, s{sT+1}, v7
    v_med3_u32 v9, v8, v9, v6
    v_max_u32 v8, v8, v6""")
def wavemax(src, dst):
    E(f"v_mov_b32 v10, v{src}\ns_nop 1")
    for r in (8, 4, 2, 1):
        E(f"v_max_u32_dpp v10, v10, v10 row_ror:{r} row_mask:0xf bank_mask:0xf\ns_nop 1")
    for i in range(4): E(f"v_readlane_b32 s{sT+4+i}, v10, {16*i}")
    E(f"s_nop 3\ns_max_u32 s{sT+4}, s{sT+4}, s{sT+5}\ns_max_u32 s{sT+6}, s{sT+6}, s{sT+7}\ns_max_u32 s{dst}, s{sT+4}, s{sT+6}")
wavemax(8, sK1)
E(f"v_cmp_eq_u32 vcc, s{sK1}, v8\ns_nop 1\nv_cndmask_b32 v8, v8, v9, vcc")
wavemax(8, sK2)
E(f"""s_lshl_b32 s{sT}, s{sW}, 3
s_add_u32 s{sT}, s{sT}, {TOP}
v_mov_b32 v5, s{sT}
v_mov_b32 v6, s{sK1}
v_mov_b32 v7, s{sK2}
ds_write_b64 v5, v[6:7]
v_mov_b32 v5, {TOP}
s_waitcnt lgkmcnt(0)
s_barrier
ds_read_b128 v[16:19], v5
ds_read_b128 v[20:23], v5 offset:16
s_waitcnt lgkmcnt(0)""")
for i in range(2, 8):
    E(f"v_med3_u32 v17, v16, v17, v{16+i}\nv_max_u32 v16, v16, v{16+i}")
E(f"""s_nop 0
v_readfirstlane_b32 s{sK1}, v16
v_readfirstlane_b32 s{sK2}, v17
s_nop 3
s_and_b32 s{sI1}, s{sK1}, 2047
s_and_b32 s{sI2}, s{sK2}, 2047
s_sub_u32 s{sI1}, 2047, s{sI1}
s_sub_u32 s{sI2}, 2047, s{sI2}
s_cmp_ge_u32 s2, 108
s_cbranch_scc1 L_ffn_done""")
E.c("FFN gate/up on the two routed tokens")
srd(WG, pG, 2211840); srd(T2, pU, 2211840)
E(f"""s_mul_i32 s{sT}, s{sW}, {160*3456}
s_lshl_b32 s{sT+1}, s2, 5
s_add_u32 s{sT}, s{sT}, s{sT+1}
v_lshrrev_b32 v5, 1, v{vL}
v_mul_u32_u24 v5, 3456, v5
v_and_b32 v6, 1, v{vL}
v_lshl_add_u32 v5, v6, 4, v5
v_add_u32 v5, s{sT}, v5
s_mov_b32 m0, s{sWL}
s_mov_b32 s{sT}, 0""")
for b in range(5):
    E(f"""buffer_load_dwordx4 v5, s[{WG}:{WG+3}], s{sT} offen lds
    s_add_u32 m0, m0, 5120
    s_nop 0
    buffer_load_dwordx4 v5, s[{T2}:{T2+3}], s{sT} offen lds
    s_sub_u32 m0, m0, 4096
    s_add_u32 s{sT}, s{sT}, 110592""")
def tokrow(stride, dst):
    E(f"""v_mov_b32 v6, s{sI1}
    v_mov_b32 v7, s{sI2}
    v_cmp_eq_u32 vcc, 1, v{vJ}
    s_nop 1
    v_cndmask_b32 v6, v6, v7, vcc
    v_mul_u32_u24 v6, {stride}, v6
    v_lshl_add_u32 v6, v{vH}, 4, v6
    v_mov_b32 v7, {OOB}
    v_cmp_lt_u32 vcc, 1, v{vJ}
    s_nop 1
    v_cndmask_b32 v{dst}, v6, v7, vcc""")
tokrow(1280, 12)
E(f"s_mul_i32 s{sT}, s{sW}, 320\ns_add_u32 s{sT}, s{sT}, s{sY}")
for k in range(10):
    E(f"buffer_load_dwordx4 {v(vX+4*k,4)}, v12, s[{WS}:{WS+3}], s{sT} offen offset:{k*32} sc1")
E(f"""v_bfe_u32 v5, v{vL}, 2, 2
v_lshl_add_u32 v5, v{vH}, 3, v5
v_lshlrev_b32 v5, 5, v5
v_and_b32 v6, 3, v{vL}
v_lshl_add_u32 v5, v6, 3, v5
v_bfe_u32 v6, v{vL}, 4, 1
v_mul_u32_u24 v6, 5120, v6
v_add3_u32 v5, v5, v6, s{sWL}
s_waitcnt vmcnt(0)""")
for k in range(10):
    for u in range(2):
        E(f"ds_read_b64_tr_b16 {v(vWB+4*k+2*u,2)}, v5 offset:{k*512+u*128}")
E("s_waitcnt lgkmcnt(0)")
for k in range(10):
    E(f"v_mfma_f32_32x32x16_bf16 v[16:31], {v(vWB+4*k,4)}, {v(vX+4*k,4)}, {'0' if k == 0 else 'v[16:31]'}")
E(f"v_add_u32 v5, s{sWL}, v{vL16}\ns_nop 7\ns_nop 3")
for g in range(4): E(f"ds_write_b128 v5, {v(16+4*g,4)} offset:{12288+g*1024}")
lu = E.label("Lup")
E(f"""s_waitcnt lgkmcnt(0)
s_barrier
s_cmp_lg_u32 s{sW}, 0
s_cbranch_scc1 {lu}
v_bfe_u32 v5, v{vL}, 3, 1
v_lshlrev_b32 v5, 10, v5
v_bfe_u32 v6, v{vL}, 2, 1
v_lshl_add_u32 v5, v6, 9, v5
v_bfe_u32 v6, v{vL}, 4, 1
v_lshl_add_u32 v5, v6, 4, v5
v_and_b32 v7, 3, v{vL}
v_lshl_add_u32 v5, v7, 2, v5
v_add_u32 v7, 0x10000, v5""")
for wr in range(4):
    E(f"ds_read_b32 v{16+wr}, v{5 if wr < 2 else 7} offset:{(wr%2)*32768+12288}")
    E(f"ds_read_b32 v{20+wr}, v{5 if wr < 2 else 7} offset:{(wr%2)*32768+12288+2048}")
E(f"""s_waitcnt lgkmcnt(0)
v_add_f32 v16, v16, v17
v_add_f32 v18, v18, v19
v_add_f32 v20, v20, v21
v_add_f32 v22, v22, v23
v_add_f32 v16, v16, v18
v_add_f32 v20, v20, v22
v_mul_f32 v17, {f2u(-math.log2(math.e))}, v16
v_exp_f32 v17, v17
s_nop 0
v_add_f32 v17, 1.0, v17
v_rcp_f32 v17, v17
v_mul_f32 v16, v16, v20
v_mul_f32 v16, v16, v17
v_cvt_pk_bf16_f32 v16, v16, v16
v_mul_u32_u24 v6, 3456, v6
v_and_b32 v7, 15, v{vL}
v_lshl_add_u32 v6, v7, 1, v6
v_lshl_add_u32 v6, v{vH}, 30, v6
s_lshl_b32 s{sT}, s2, 5
s_add_u32 s{sT}, s{sT}, s{sH}
buffer_store_short v16, v6, s[{WS}:{WS+3}], s{sT} offen sc1
s_waitcnt vmcnt(0)""")
signal(4, 2)
E(f"""{lu}:
s_barrier
s_cmp_ge_u32 s2, 20
s_cbranch_scc1 L_ffn_done""")
E.c("FFN down + scatter into the residual stream")
srd(WG, pD, 2211840)
E(f"""s_mul_i32 s{sT}, s{sW}, {432*1280}
s_lshl_b32 s{sT+1}, s2, 6
s_add_u32 s{sT}, s{sT}, s{sT+1}
v_lshrrev_b32 v5, 2, v{vL}
v_mul_u32_u24 v5, 1280, v5
v_and_b32 v6, 3, v{vL}
v_lshl_add_u32 v5, v6, 4, v5
v_add_u32 v5, s{sT}, v5
s_mov_b32 m0, s{sWL}
s_mov_b32 s{sT}, 0""")
for k in range(27):
    E(f"""buffer_load_dwordx4 v5, s[{WG}:{WG+3}], s{sT} offen lds
    s_add_u32 m0, m0, 1024
    s_add_u32 s{sT}, s{sT}, 20480""")
ld = E.label("Ldw")
E(f"s_cmp_lg_u32 s{sW}, 0\ns_cbranch_scc1 {ld}")
def st():
    E(f"v_lshlrev_b32 v6, 6, v{vL}\nv_add_u32 v7, 64, v{vL}\nv_min_u32 v7, 107, v7\nv_lshlrev_b32 v7, 6, v7")
poll(4, 2, st)
E(f"""{ld}:
s_barrier
v_mul_u32_u24 v6, 3456, v{vJ}
v_lshl_add_u32 v6, v{vH}, 4, v6
v_mov_b32 v7, {OOB}
v_cmp_lt_u32 vcc, 1, v{vJ}
s_mul_i32 s{sT}, s{sW}, 864
s_add_u32 s{sT}, s{sT}, s{sH}
v_cndmask_b32 v6, v6, v7, vcc""")
for k in range(27):
    E(f"buffer_load_dwordx4 {v(32+4*k,4)}, v6, s[{WS}:{WS+3}], s{sT} offen offset:{k*32} sc1")
E(f"""v_bfe_u32 v5, v{vL}, 2, 2
v_lshl_add_u32 v5, v{vH}, 3, v5
v_lshlrev_b32 v5, 6, v5
v_bfe_u32 v6, v{vL}, 4, 1
v_lshl_add_u32 v5, v6, 5, v5
v_and_b32 v6, 3, v{vL}
v_lshl_add_u32 v5, v6, 3, v5
v_add_u32 v5, s{sWL}, v5
s_waitcnt vmcnt(0)""")
for k in range(27):
    for u in range(2):
        E(f"ds_read_b64_tr_b16 {v(140+4*k+2*u,2)}, v5 offset:{k*1024+u*256}")
E("s_waitcnt lgkmcnt(0)")
for k in range(27):
    E(f"v_mfma_f32_32x32x16_bf16 v[16:31], {v(140+4*k,4)}, {v(32+4*k,4)}, {'0' if k == 0 else 'v[16:31]'}")
E(f"v_add_u32 v5, s{sWL}, v{vL16}\ns_nop 7\ns_nop 3")
for g in range(4): E(f"ds_write_b128 v5, {v(16+4*g,4)} offset:{28672+g*1024}")
ld2 = E.label("Ldn")
E(f"""s_waitcnt lgkmcnt(0)
s_barrier
s_cmp_lg_u32 s{sW}, 0
s_cbranch_scc1 {ld2}
v_bfe_u32 v5, v{vL}, 3, 2
v_lshlrev_b32 v5, 10, v5
v_bfe_u32 v6, v{vL}, 2, 1
v_lshl_add_u32 v5, v6, 9, v5
v_lshl_add_u32 v5, v{vH}, 4, v5
v_and_b32 v7, 3, v{vL}
v_lshl_add_u32 v5, v7, 2, v5
v_add_u32 v7, 0x10000, v5""")
for wr in range(4):
    E(f"ds_read_b32 v{16+wr}, v{5 if wr < 2 else 7} offset:{(wr%2)*32768+28672}")
E(f"""v_mov_b32 v6, s{sI1}
v_mov_b32 v7, s{sI2}
v_mov_b32 v8, s{sK1}
v_mov_b32 v9, s{sK2}
v_cmp_eq_u32 vcc, 1, v{vH}
s_lshl_b32 s{sT}, s2, 6
s_nop 0
v_cndmask_b32 v6, v6, v7, vcc
v_cndmask_b32 v8, v8, v9, vcc
v_mul_u32_u24 v6, 1280, v6
v_lshl_add_u32 v6, v{vJ}, 1, v6
buffer_load_ushort v10, v6, s[{XOUT}:{XOUT+3}], s{sT} offen sc1
v_and_b32 v8, 0xfffff800, v8
v_or_b32 v8, 0x400, v8
v_ashrrev_i32 v9, 31, v8
v_not_b32 v9, v9
v_or_b32 v9, 0x80000000, v9
v_xor_b32 v8, v8, v9
v_mul_f32 v8, {f2u(-math.log2(math.e))}, v8
v_exp_f32 v8, v8
s_nop 0
v_add_f32 v8, 1.0, v8
v_rcp_f32 v8, v8
s_waitcnt lgkmcnt(0)
v_add_f32 v16, v16, v17
v_add_f32 v18, v18, v19
v_add_f32 v16, v16, v18
s_waitcnt vmcnt(0)
v_lshlrev_b32 v10, 16, v10
v_fmac_f32 v10, v16, v8
v_cvt_pk_bf16_f32 v10, v10, v10
buffer_store_short v10, v6, s[{XOUT}:{XOUT+3}], s{sT} offen sc1
s_waitcnt vmcnt(0)""")
signal(5, 2)
lnw = E.label("Lnw"); lw2 = E.label("Lw2")
E(f"""{ld2}:
L_ffn_done:
s_cmp_lg_u32 s{sLAY}, 0
s_cbranch_scc1 L_exit
s_lshr_b32 s{sT}, s{sI1}, 5
s_lshr_b32 s{sT+1}, s{sI2}, 5
s_cmp_eq_u32 s{sT}, s{sRB}
s_cbranch_scc1 {lw2}
s_cmp_eq_u32 s{sT+1}, s{sRB}
s_cbranch_scc0 {lnw}
{lw2}:""")
def st():
    E(f"v_min_u32 v6, 19, v{vL}\nv_lshlrev_b32 v6, 6, v6")
poll(5, 1, st)
E(f"""{lnw}:
s_barrier
s_mov_b32 s{sLAY}, 1""")
srd(XIN, pWS, 2621440, WS_X2)
srd(XOUT, pOUT, 2621440)
E(f"""s_add_u32 s{sKV}, s{sKV}, 0x40000
s_add_u32 s{sSTAT}, s{sSTAT}, 0x20000
s_add_u32 s{sR}, s{sR}, 0x2000
s_add_u32 s{sH}, s{sH}, 0x2000
s_add_u32 s{sOB}, s{sOB}, 0x280000
s_add_u32 s{sY}, s{sY}, 0x280000
s_add_u32 s{sFL}, s{sFL}, {6*0x4000}
s_branch L_layer
L_exit:
s_endpgm
.section .rodata,"a"
.p2align 6
.amdhsa_kernel {NAME}_kernel
.amdhsa_next_free_vgpr 512
.amdhsa_next_free_sgpr 102
.amdhsa_accum_offset 256
.amdhsa_group_segment_fixed_size 0
.amdhsa_kernarg_size 104
.amdhsa_user_sgpr_count 2
.amdhsa_user_sgpr_kernarg_segment_ptr 1
.amdhsa_system_sgpr_workgroup_id_x 1
.end_amdhsa_kernel""")
open(sys.argv[1], "w").write(E.text())
```

```python
import sys, math, os
from asmlib import *
NAME = "interleave_layers__grouped_kv_mqa__moe_arch_mod__prompt"
STOP = int(sys.argv[2]) if len(sys.argv) > 2 else 99
PROF = len(sys.argv) > 3
E = Asm()
WS_FL = 0x1000; WS_KV = 0x40000; WS_WQF = 0x100000; WS_WOF = 0x1C8000; WS_SM = 0x290000; WS_OB = 0x300000; WS_VB = 0x580000
K2OFF = 0x10000; VOFF = 0x18000
SM_H = 0x1000; SM_XS = 0x3000; SM_CAND = 0x8000; SM_L = 0x30000
OOB = 0x40000000
PREG = 36864; CONST = 6400; RING = 12800; WOPREP = 33280; CSO = 34304
OST = 24576
BB = 0; P4 = 40960; FP = 61440; FFNW = 98304
QAREA = 147456; P6 = 147456; STAT1 = 159744; STAT2 = 160768; VT = 161792; TOP = 163328
LDS_BYTES = 163840
sW, sRB, sCB, sTAG, sLAY = 3, 4, 5, 6, 7
WS, XO, WG, T2 = 8, 12, 16, 20
sMODE, sWL, sI1, sI2, sK1, sK2 = 24, 25, 26, 27, 28, 29
sSP = 30
sEX = 32
sSEG = 34
sKVO = 40
sT = 52
sKV, sSM, sFLK, sLOC = 64, 65, 66, 39
sM1, sM2, sS1, sS2, sO1, sO2, sR1, sR2 = 78, 79, 90, 91, 100, 101, 0, 1
pX, pWQ, pWK, pWV, pWO, pWR, pG, pU, pD, pOUT, pDBG, pWS = 68, 70, 72, 74, 76, 80, 82, 84, 86, 88, 90, 92
vL, vJ, vH, vL16 = 1, 2, 3, 4
vAL, vMU, vRS = 11, 12, 13
vOST, vVO = 14, 15
vS = 16; vP = 80; vQ = 96; vXR = 116; vQa = 126; vQb = 127
G = 16; vF6 = 128; vF4 = 168; vWP = 208; vC6 = 244; vCR = 248; vKEY = 249
vR6 = 112
vA1, vA2 = 254, 255
NPRE = 9
aK1 = 0; aK2 = 64; aV = 96; aO = 224
CSC = math.log2(math.e) / math.sqrt(20.0)
L2E = math.log2(math.e)
TSN = []
def TS(name):
    if not PROF: return
    i = len(TSN); TSN.append(name)
    E(f"""s_memrealtime s[94:95]
    s_memtime s[98:99]
    s_lshl_b32 s96, s{sLAY}, 5
    s_add_u32 s96, s96, {i}
    s_mov_b32 s97, m0
    s_mov_b32 m0, s96
    s_waitcnt lgkmcnt(0)
    v_writelane_b32 v253, s94, m0
    v_writelane_b32 v252, s98, m0
    s_mov_b32 m0, s97""")
def stop(n):
    if STOP == n: E("s_waitcnt vmcnt(0) lgkmcnt(0)\ns_branch L_dump")
def srd(d, p, size):
    E(f"s_mov_b32 s{d}, s{p}\ns_mov_b32 s{d+1}, s{p+1}\ns_mov_b32 s{d+2}, {size}\ns_mov_b32 s{d+3}, 0x20000")
ws = f"s[{WS}:{WS+3}]"
def signal(soff):
    E(f"""v_mov_b32 v5, s{sTAG}
    v_mov_b32 v6, 0
    s_mov_b64 exec, 1
    buffer_store_dword v5, v6, {ws}, s{soff} offen sc1
    s_mov_b64 exec, -1""")
def spin(body, bad_cmp):
    lp = E.label("Lsp"); ld = E.label("Lsd")
    E(f"s_mov_b32 s{sT+11}, 0x80000\n{lp}:")
    body()
    E(f"""{bad_cmp}
    s_sub_u32 s{sT+11}, s{sT+11}, 1
    s_cbranch_scc1 {ld}
    s_nop 2
    s_cbranch_vccnz {lp}
    {ld}:""")
def maxtree(regs, t):
    regs = list(regs)
    E(f"v_max3_u32 v{t}, v{regs[0]}, v{regs[1]}, v{regs[2]}")
    i = 3
    while i + 1 < len(regs):
        E(f"v_max3_u32 v{t}, v{t}, v{regs[i]}, v{regs[i+1]}"); i += 2
    if i < len(regs): E(f"v_max_u32 v{t}, v{t}, v{regs[i]}")
def maxtree2(regs, t, t2):
    h = len(regs)//2
    a_, b_ = list(regs[:h]), list(regs[h:])
    E(f"v_max3_u32 v{t}, v{a_[0]}, v{a_[1]}, v{a_[2]}\nv_max3_u32 v{t2}, v{b_[0]}, v{b_[1]}, v{b_[2]}")
    i = 3
    while i < h:
        if i + 1 < h:
            E(f"v_max3_u32 v{t}, v{t}, v{a_[i]}, v{a_[i+1]}\nv_max3_u32 v{t2}, v{t2}, v{b_[i]}, v{b_[i+1]}")
        else:
            E(f"v_max3_u32 v{t}, v{t}, v{a_[i]}, v{b_[i]}")
        i += 2
    E(f"v_max_u32 v{t}, v{t}, v{t2}")
va3 = lambda i: [vL16, vA1, vA2][i // 4]
def gather10(soff):
    def body():
        for i in range(10):
            E(f"buffer_load_dwordx4 {v(G+4*i,4)}, v{va3(i)}, {ws}, s{soff} offen offset:{(i%4)*1024} sc1")
        E("s_waitcnt vmcnt(0)")
        maxtree2(range(G, G+40), 5, 6)
    spin(body, "v_cmp_eq_u32 vcc, -1, v5")
def dual(stores):
    l1 = E.label("Lrm"); l2 = E.label("Lrd")
    E(f"s_cmp_eq_u32 s{sLOC}, 0\ns_cbranch_scc1 {l1}")
    stores("")
    E(f"s_branch {l2}\n{l1}:")
    stores("sc1")
    E(f"{l2}:")
def pubgather(stores, soff):
    dual(stores)
    gather10(soff)
def wavemax(src_, dst, rows=4):
    E(f"v_mov_b32 v10, v{src_}\ns_nop 1")
    for r in (8, 4, 2, 1):
        E(f"v_max_u32_dpp v10, v10, v10 row_ror:{r} row_mask:0xf bank_mask:0xf\ns_nop 1")
    for i in range(rows): E(f"v_readlane_b32 s{sT+4+i}, v10, {16*i}")
    if rows == 4:
        E(f"s_nop 1\ns_max_u32 s{sT+4}, s{sT+4}, s{sT+5}\ns_max_u32 s{sT+6}, s{sT+6}, s{sT+7}\ns_max_u32 s{dst}, s{sT+4}, s{sT+6}")
    else:
        E(f"s_nop 3\ns_max_u32 s{dst}, s{sT+4}, s{sT+5}")
def center():
    E(f"s_mov_b32 s{sT}, 0x00003f80\ns_mov_b32 s{sT+1}, 0x3f800000\nv_sub_f32 v7, 0, v{vMU}")
    for b in range(0, 40, 8):
        for i in range(8):
            E(f"v_dot2_f32_bf16 v{56+2*i}, v{G+b+i}, s{sT}, v7\nv_dot2_f32_bf16 v{57+2*i}, v{G+b+i}, s{sT+1}, v7")
        for i in range(8):
            E(f"v_cvt_pk_bf16_f32 v{G+b+i}, v{56+2*i}, v{57+2*i}")
def halfsum(r, t):
    E(f"v_mov_b32 v{t}, v{r}\ns_nop 1\nv_permlane32_swap_b32 v{r}, v{t}\ns_nop 0\nv_add_f32 v{r}, v{r}, v{t}")
def sum8(d, x):
    E(f"""v_add_f32 v{x}, v{x}, v{x+1}
    v_add_f32 v{x+2}, v{x+2}, v{x+3}
    v_add_f32 v{x+4}, v{x+4}, v{x+5}
    v_add_f32 v{x+6}, v{x+6}, v{x+7}
    v_add_f32 v{x}, v{x}, v{x+2}
    v_add_f32 v{x+4}, v{x+4}, v{x+6}
    v_add_f32 v{d}, v{x}, v{x+4}""")
def sum4q(d, x, n):
    for i in range(0, n, 2): E(f"v_pk_add_f32 {v(x+i,2)}, {v(x+i,2)}, {v(x+n+i,2)}")
    for i in range(0, n, 2): E(f"v_pk_add_f32 {v(x+2*n+i,2)}, {v(x+2*n+i,2)}, {v(x+3*n+i,2)}")
    for i in range(0, n, 2): E(f"v_pk_add_f32 {v(d+i,2)}, {v(x+i,2)}, {v(x+2*n+i,2)}")
MF = "v_mfma_f32_32x32x16_bf16"

E(f"""; @launch grid=(256,1,1) block=(256,1,1) lds={LDS_BYTES}
.amdgcn_target "amdgcn-amd-amdhsa--gfx950"
.text
.globl {NAME}_kernel
.p2align 8
.type {NAME}_kernel,@function
{NAME}_kernel:
s_cmp_ge_u32 s2, 256
s_cbranch_scc1 L_exit2
s_load_dwordx16 s[68:83], s[0:1], 0
s_load_dwordx8 s[84:91], s[0:1], 64
s_load_dwordx2 s[92:93], s[0:1], 96
v_and_b32 v{vL}, 63, v0
v_lshrrev_b32 v5, 6, v0
v_and_b32 v{vJ}, 31, v0
v_bfe_u32 v{vH}, v0, 5, 1
v_readfirstlane_b32 s{sW}, v5
v_lshlrev_b32 v{vL16}, 4, v{vL}
s_and_b32 s{sT}, s2, 7
s_lshr_b32 s{sT+1}, s2, 5
s_lshl_b32 s{sT+1}, s{sT+1}, 3
s_or_b32 s{sRB}, s{sT}, s{sT+1}
s_bfe_u32 s{sCB}, s2, 0x20003
s_mul_i32 s{sWL}, s{sW}, {PREG}
s_mov_b32 s{sLAY}, 0
s_mov_b32 s{sMODE}, 0
s_mov_b64 s[{sSP}:{sSP+1}], -1
s_mul_i32 s{sT}, s{sRB}, 40960
s_mul_i32 s{sT+1}, s{sW}, 320
s_add_u32 s{sT+2}, s{sT}, s{sT+1}
v_mul_u32_u24 v5, 1280, v{vJ}
v_lshl_add_u32 v6, v{vH}, 3, v5
v_lshl_add_u32 v5, v{vH}, 4, v5
s_mul_i32 s{sT+3}, s{sW}, 6400
v_add_u32 v7, s{sT+3}, v{vL16}
v_add_u32 v{vA1}, 4096, v{vL16}
v_add_u32 v{vA2}, 8192, v{vL16}
s_mov_b32 m0, s{sWL}
s_waitcnt lgkmcnt(0)
s_load_dword s{sTAG}, s[{pWS}:{pWS+1}], 0""")
TS("start")
l6a = E.label("L6a")
E(f"""s_cmp_ge_u32 s{sCB}, 2
s_cbranch_scc1 {l6a}
s_cmp_eq_u32 s{sCB}, 0
s_cselect_b32 s{T2}, s{pWK}, s{pWV}
s_cselect_b32 s{T2+1}, s{pWK+1}, s{pWV+1}
s_mov_b32 s{T2+2}, 25600
s_mov_b32 s{T2+3}, 0x20000
s_mov_b32 s{sT+4}, 4096""")
for i in range(4):
    E(f"buffer_load_dwordx4 v7, s[{T2}:{T2+3}], 0 offen offset:{i*1024} lds")
E("s_add_u32 m0, m0, 4096\ns_nop 0")
for i in range(2):
    E(f"buffer_load_dwordx4 v7, s[{T2}:{T2+3}], s{sT+4} offen offset:{i*1024} lds")
E(f"""s_mov_b64 exec, 0xffff
buffer_load_dwordx4 v7, s[{T2}:{T2+3}], s{sT+4} offen offset:2048 lds
s_mov_b64 exec, -1
{l6a}:""")
srd(T2, pWR, 1280)
E(f"v_lshlrev_b32 v7, 1, v{vL}")
for i in range(3):
    E(f"buffer_load_ushort v{100+2*i}, v7, s[{T2}:{T2+3}], s{sT+1} offen offset:{128*i}")
srd(XO, pX, 2621440)
for k in range(10):
    E(f"buffer_load_dwordx4 {v(G+4*k,4)}, v5, s[{XO}:{XO+3}], s{sT+2} offen offset:{k*32}")
vWo = 208; vTa = 96
srd(WG, pWQ, 819200)
E(f"""s_lshr_b32 s{sT+5}, s2, 3
s_lshl_b32 s{sT+5}, s{sT+5}, 2
s_add_u32 s{sT+5}, s{sT+5}, s{sW}
s_mul_i32 s{sT+5}, s{sT+5}, 6400""")
for i in range(7):
    E(f"buffer_load_dwordx4 {a(128+4*i,4)}, v{va3(i)}, s[{WG}:{WG+3}], s{sT+5} offen offset:{(i%4)*1024}")
E(f"""s_mul_i32 s{sT+5}, s{sW}, 204800
s_mul_i32 s{sT+6}, s{sCB}, 320
s_add_u32 s{sT+5}, s{sT+5}, s{sT+6}
s_mov_b32 s{sT+6}, 52429""")
for i in range(5):
    E(f"""v_add_u32 v8, {64*i}, v{vL}
    v_mul_lo_u32 v9, v8, s{sT+6}
    v_lshrrev_b32 v9, 20, v9
    v_mul_u32_u24 v9, 960, v9
    v_lshl_add_u32 v9, v8, 4, v9
    v_subrev_u32 v9, {1024*i if i < 4 else 0}, v9
    v_add_u32 v{vWo+i}, s{sT+5}, v9""")
def wloads(slot, k):
    E(f"s_add_u32 m0, s{sWL}, {RING + slot*5120}\ns_mov_b32 s{sT+7}, {k*20480}")
    for i in range(4):
        E(f"buffer_load_dwordx4 v{vWo+i}, s[{WG}:{WG+3}], s{sT+7} offen offset:{1024*i} lds")
    E("s_add_u32 m0, m0, 4096\ns_nop 0")
    E(f"buffer_load_dwordx4 v{vWo+4}, s[{WG}:{WG+3}], s{sT+7} offen lds")
def late_loads():
    E(f"""s_mul_i32 s{sT}, s{sRB}, 40960
    v_mul_u32_u24 v5, 1280, v{vJ}
    v_lshl_add_u32 v6, v{vH}, 3, v5
    v_lshl_add_u32 v5, v{vH}, 4, v5
    s_mul_i32 s{sT+4}, s{sCB}, 320
    s_mul_i32 s{sT+5}, s{sW}, 80
    s_add_u32 s{sT+4}, s{sT+4}, s{sT+5}
    s_add_u32 s{sT+4}, s{sT+4}, s{sT}
    buffer_load_dwordx4 {v(vXR,4)}, v5, s[{XO}:{XO+3}], s{sT+4} offen
    buffer_load_dwordx4 {v(vXR+4,4)}, v5, s[{XO}:{XO+3}], s{sT+4} offen offset:32
    buffer_load_dwordx2 {v(vXR+8,2)}, v6, s[{XO}:{XO+3}], s{sT+4} offen offset:64""")
    srd(T2, pWO, 819200)
    E(f"""s_lshl_b32 s{sG}, s2, 2
    s_add_u32 s{sG}, s{sG}, s{sW}
    s_min_u32 s{sT}, s{sG}, 799
    s_mul_i32 s{sT+1}, s{sT}, 52429
    s_lshr_b32 s{sT+1}, s{sT+1}, 21
    s_mul_i32 s{sT+2}, s{sT+1}, 40
    s_sub_u32 s{sS}, s{sT}, s{sT+2}
    s_mul_i32 s{sT+2}, s{sT+1}, 52429
    s_lshr_b32 s{sT+2}, s{sT+2}, 18
    s_mul_i32 s{sT+3}, s{sT+2}, 5
    s_sub_u32 s{sTT}, s{sT+1}, s{sT+3}""")
    for hh in range(2):
        E(f"""s_lshl_b32 s{sT+8}, s{sS}, 1
        s_add_u32 s{sT+8}, s{sT+8}, {hh}
        s_mul_i32 s{sT+9}, s{sT+8}, 52429
        s_lshr_b32 s{sT+9}, s{sT+9}, 18
        s_mul_i32 s{sT+10}, s{sT+9}, 5
        s_sub_u32 s{sT+8}, s{sT+8}, s{sT+10}
        s_lshl_b32 s{sT+10}, s{sT+8}, 3
        s_mov_b32 s{sEX}, 0x18140400
        s_mov_b32 s{sEX+1}, 0x10
        s_lshr_b64 s[{sEX}:{sEX+1}], s[{sEX}:{sEX+1}], s{sT+10}
        s_and_b32 s{sEX}, s{sEX}, 0xff
        s_mul_i32 s{sT+9}, s{sT+9}, 40
        s_add_u32 s{sT+4+2*hh}, s{sT+9}, s{sEX}
        s_cmp_eq_u32 s{sT+8}, 4
        s_cselect_b32 s{sT+5+2*hh}, 20, 8""")
    E(f"""v_cmp_eq_u32 vcc, 1, v{vH}
    v_mov_b32 v8, s{sT+4}
    v_mov_b32 v9, s{sT+6}
    v_cndmask_b32 v8, v8, v9, vcc
    v_mov_b32 v9, s{sT+5}
    v_mov_b32 v10, s{sT+7}
    v_cndmask_b32 v9, v9, v10, vcc
    v_bfe_u32 v10, v{vL}, 4, 1
    v_mad_u32_u24 v8, v9, v10, v8
    v_bfe_u32 v10, v{vL}, 2, 2
    v_add_u32 v8, v8, v10
    v_mul_u32_u24 v8, 1280, v8
    s_cmp_eq_u32 s{sTT}, 4
    s_cselect_b32 s{sT+4}, 80, 16
    s_mul_i32 s{sT+5}, s{sTT}, 80
    s_cselect_b32 s{sT+5}, 64, s{sT+5}
    s_mul_i32 s{sT+6}, s{sT+2}, 320
    s_add_u32 s{sT+5}, s{sT+5}, s{sT+6}
    v_and_b32 v10, 3, v{vL}
    v_mad_u32_u24 v8, v10, s{sT+4}, v8
    s_add_u32 m0, s{sWL}, {WOPREP}
    s_nop 0
    buffer_load_dwordx4 v8, s[{T2}:{T2+3}], s{sT+5} offen lds""")

sG, sTT, sS = sSEG, sSEG+1, sSEG+2
late_loads()
srd(WS, pWS, 0x10000000)
E(f"""s_mov_b32 s{sKV}, {WS_KV}
s_mov_b32 s{sSM}, {WS_SM}
s_mov_b32 s{sFLK}, {WS_FL}
v_mul_u32_u24 v{vVO}, 336, v{vH}
v_lshl_add_u32 v{vVO}, v{vJ}, 4, v{vVO}
v_mov_b32 v5, {OOB}
v_cmp_lt_u32 vcc, 20, v{vJ}
s_mul_i32 s{sT}, s{sW}, {OST}
v_add_u32 v{vOST}, s{sT}, v{vL16}
v_cndmask_b32 v{vVO}, v{vVO}, v5, vcc
v_bfe_u32 v5, v{vL}, 3, 2
v_and_b32 v6, 7, v{vL}
v_lshlrev_b32 v7, 11, v5
v_lshl_add_u32 v7, v{vH}, 9, v7
v_lshl_add_u32 v7, v6, 4, v7
v_add_u32 v{vQa}, {QAREA}, v7
v_lshlrev_b32 v7, 9, v5
v_lshl_add_u32 v7, v{vH}, 8, v7
v_lshl_add_u32 v7, v6, 3, v7
v_add_u32 v{vQb}, {QAREA+8192}, v7""")
E(f"""v_bfe_u32 v5, v{vL}, 2, 2
v_lshl_add_u32 v5, v{vH}, 3, v5
v_bfe_u32 v7, v{vL}, 4, 1
v_and_b32 v8, 3, v{vL}
v_lshl_add_u32 v6, v7, 2, v8
v_mul_u32_u24 v9, 320, v5
v_add_u32 v9, s{sWL}, v9
v_add_u32 v9, {RING}, v9
v_add_u32 v10, v6, v7
v_lshl_add_u32 v{vTa}, v10, 3, v9
v_lshrrev_b32 v10, 1, v6
v_mul_u32_u24 v10, 80, v10
v_and_b32 v8, 1, v6
v_mad_u32_u24 v10, v8, 40, v10
v_add3_u32 v{vTa+1}, v10, v9, 32
v_mul_u32_u24 v9, 40, v5
v_min_u32 v10, 4, v6
v_lshlrev_b32 v10, 3, v10
v_mov_b32 v8, {CONST}
v_cmp_lt_u32 vcc, 5, v6
v_add_u32 v9, s{sWL}, v9
v_mul_u32_u24 v7, 40, v{vL}
v_cndmask_b32 v10, v10, v8, vcc
v_add_u32 v{vTa+2}, v9, v10
s_add_u32 s{sT}, s{sWL}, {CONST}
v_add_u32 v7, s{sT}, v7
s_add_u32 s{sT}, s{sWL}, {CSO}
v_lshl_add_u32 v{vTa+3}, v{vJ}, 2, s{sT}
s_getreg_b32 s{sT+1}, hwreg(HW_REG_XCC_ID, 0, 4)
s_lshl_b32 s{sT+2}, s{sRB}, 2
s_add_u32 s{sT+2}, s{sT+2}, s{sCB}
s_lshl_b32 s{sT+2}, s{sT+2}, 6
s_add_u32 s{sT+2}, s{sT+2}, {WS_FL+0x10000}
v_mov_b32 v8, 0x3f80
v_mov_b32 v101, 0
v_mov_b32 v103, 0
v_mov_b32 v105, 0
s_waitcnt lgkmcnt(0)
s_add_u32 s{sTAG}, s{sTAG}, 1
s_lshl_b32 s{sT}, s{sTAG}, 4
s_or_b32 s{sLOC}, s{sT}, s{sT+1}
v_mov_b32 v5, s{sLOC}
v_mov_b32 v6, 0
s_waitcnt vmcnt(21)
s_mov_b64 exec, 1
buffer_store_dword v5, v6, {ws}, s{sT+2} offen sc1
s_mov_b64 exec, -1
v_lshl_or_b32 v100, v100, 16, v8
v_lshl_or_b32 v102, v102, 16, v8
v_lshl_or_b32 v104, v104, 16, v8
ds_write_b64 v7, v[100:101]
ds_write_b64 v7, v[102:103] offset:2560
s_mov_b64 exec, 0xffffffff
ds_write_b64 v7, v[104:105] offset:5120
s_mov_b64 exec, -1
s_waitcnt lgkmcnt(0)""")
for k in range(10):
    for u in range(2):
        E(f"ds_read_b64_tr_b16 {v(vF6+4*k+2*u,2)}, v{vTa+2} offset:{k*640+u*160}")
wloads(0, 0)
E(f"""s_mov_b32 s{sT}, 0x3f803f80
v_mov_b32 v5, 0
v_mov_b32 v6, 0
s_waitcnt lgkmcnt(0)""")
for i in range(40):
    E(f"v_dot2_f32_bf16 v{5+i%2}, v{vF6+i}, s{sT}, v{5+i%2}")
wloads(1, 1)
E("v_add_f32 v5, v5, v6")
halfsum(5, 6)
E(f"ds_write_b32 v{vTa+3}, v5\ns_waitcnt vmcnt(22)")
TS("x_arrived")
E("L_lnkv:")
E.c("K / V / router tile on the raw 32x160 slab + LayerNorm statistics (mean via a ones row, folded in afterwards)")
A6 = 64
E("v_mov_b32 v6, 0\nv_mov_b32 v7, 0")
for k in range(10):
    E(f"{MF} {v(A6,16)}, {v(vF6+4*k,4)}, {v(G+4*k,4)}, {'0' if k == 0 else v(A6,16)}")
    for i in range(4*k, 4*k+4):
        E(f"v_dot2_f32_bf16 v{6+i%2}, v{G+i}, v{G+i}, v{6+i%2}")
E(f"""s_lshl_b32 s{sT}, s{sW}, 4
s_add_u32 s{sT}, s{sT}, {STAT1}
v_lshlrev_b32 v8, 6, v{vJ}
v_add_f32 v7, v6, v7
v_add_u32 v9, s{sT}, v8
v_add_u32 v8, {STAT1}, v8
v_mov_b32 v6, v7
s_mul_i32 s{sT}, s{sW}, 3072
s_add_u32 s{sT}, s{sT}, {P6}
v_permlane32_swap_b32 v6, v7
v_add_u32 v10, s{sT}, v{vL16}
s_min_u32 s{sT}, s{sW}, 2
s_lshl_b32 s{sT+1}, s{sT}, 10
s_add_u32 s{sT+1}, s{sT+1}, {P6}
v_add_f32 v{A6+14}, v6, v7""")
for q in range(3): E(f"ds_write_b128 v10, {v(A6+4*q,4)} offset:{q*1024}")
E(f"""s_mov_b64 exec, 0xffffffff
ds_write_b128 v9, {v(A6+12,4)}
s_mov_b64 exec, -1
v_add_u32 v9, s{sT+1}, v{vL16}
s_waitcnt lgkmcnt(0)
s_barrier""")
for i in range(4): E(f"ds_read_b128 {v(80+4*i,4)}, v8 offset:{16*i}")
for wr in range(4): E(f"ds_read_b128 {v(64+4*wr,4)}, v9 offset:{wr*3072}")
lc6 = E.label("Lc6")
E(f"""s_cmp_lg_u32 s{sMODE}, 0
s_cbranch_scc1 {lc6}
s_lshl_b32 s{sT}, s{sT}, 5
s_add_u32 s{sT}, s{sT}, {CSO}
v_lshl_add_u32 v5, v{vH}, 4, s{sT}
v_add_u32 v6, {2*PREG}, v5
v_mov_b32 v7, {CSO+100}
v_mov_b32 v10, {CSO+100+2*PREG}""")
for wr in range(4): E(f"ds_read_b128 {v(100+4*wr,4)}, v{5+wr//2} offset:{(wr%2)*PREG}")
for wr in range(4): E(f"ds_read_b32 v{56+wr}, v{7 if wr < 2 else 10} offset:{(wr%2)*PREG}")
E("s_waitcnt lgkmcnt(0)")
sum4q(vC6, 100, 4)
E(f"v_add_f32 v56, v56, v57\nv_add_f32 v58, v58, v59\nv_add_f32 v{vCR}, v56, v58")
E(f"{lc6}:\ns_waitcnt lgkmcnt(4)")
sum4q(80, 80, 4)
E(f"""v_mul_f32 v{vMU}, {f2u(1.0/640)}, v80
v_mul_f32 v5, {f2u(1.0/640)}, v82
v_fma_f32 v5, -v{vMU}, v{vMU}, v5
v_max_f32 v5, 0, v5
v_add_f32 v6, {f2u(1e-5)}, v5
v_rsq_f32 v{vRS}, v6
s_waitcnt lgkmcnt(0)""")
sum4q(vR6, 64, 4)
E(f"""v_add_f32 v6, 1.0, v{vRS}
v_mul_f32 v7, v6, v6
v_mov_b32 v8, {f2u(1e-5)}
v_fmac_f32 v8, v5, v7
v_rsq_f32 v8, v8""")
for i in range(4): E(f"v_fma_f32 v{vR6+i}, -v{vMU}, v{vC6+i}, v{vR6+i}")
E(f"""v_mul_f32 v6, v6, v8
v_cndmask_b32 v{vAL}, v6, v{vRS}, s[{sSP}:{sSP+1}]
s_cmp_eq_u32 s{sMODE}, 1
s_cbranch_scc1 L_ln_ret1
L_kvpost:""")
TS("lnkv_done")
lk1 = E.label("Lk"); lkv = E.label("Lkv"); lk2 = E.label("Lk"); lk3 = E.label("Lk"); lk4 = E.label("Lk")
for i in range(4): E(f"v_mul_f32 v{56+i}, v{vR6+i}, v{vAL}")
E(f"""s_cmp_ge_u32 s{sCB}, 2
s_cbranch_scc1 {lk1}
s_cmp_eq_u32 s{sW}, 3
s_cbranch_scc1 {lk1}
s_lshl_b32 s{sT}, s{sW}, 9
s_add_u32 s{sT}, s{sT}, {VT}
s_cmp_eq_u32 s{sCB}, 1
s_cbranch_scc1 {lkv}
v_cvt_pk_bf16_f32 v60, v56, v57
v_cvt_pk_bf16_f32 v61, v58, v59
v_lshl_add_u32 v5, v{vL}, 3, s{sT}
ds_write_b64 v5, v[60:61]
s_branch {lk1}
{lkv}:
s_cmp_lg_u32 s{sW}, 2
s_cbranch_scc1 {lk2}
v_cmp_eq_u32 vcc, 1, v{vH}
s_nop 1
v_cndmask_b32 v56, v56, 1.0, vcc
{lk2}:
v_cvt_pk_bf16_f32 v60, v56, v57
v_cvt_pk_bf16_f32 v61, v58, v59
v_and_b32 v5, 0x13, v{vJ}
v_bfe_u32 v6, v{vJ}, 2, 1
v_lshl_add_u32 v5, v6, 3, v5
v_bfe_u32 v6, v{vJ}, 3, 1
v_lshl_add_u32 v5, v6, 2, v5
v_lshlrev_b32 v5, 1, v5
v_lshl_add_u32 v5, v{vH}, 8, v5
v_add_u32 v5, s{sT}, v5
ds_write_b16 v5, v60
ds_write_b16_d16_hi v5, v60 offset:64
ds_write_b16 v5, v61 offset:128
ds_write_b16_d16_hi v5, v61 offset:192
{lk1}:
s_waitcnt lgkmcnt(0)
s_barrier
s_cmp_ge_u32 s{sCB}, 2
s_cbranch_scc1 {lk3}
s_cmp_lg_u32 s{sW}, 0
s_cbranch_scc1 {lk3}
s_cmp_eq_u32 s{sCB}, 1
s_cbranch_scc1 {lk4}
v_lshlrev_b32 v5, 3, v{vL}
v_add_u32 v5, {VT}, v5
ds_read_b64 v[56:57], v5
ds_read_b64 v[58:59], v5 offset:512
ds_read_b64 v[60:61], v5 offset:1024
s_lshl_b32 s{sT}, s{sRB}, 10
s_add_u32 s{sT}, s{sT}, s{sKV}
s_lshr_b32 s{sT+1}, s{sRB}, 1
s_lshl_b32 s{sT+1}, s{sT+1}, 10
s_and_b32 s{sT+2}, s{sRB}, 1
s_lshl_b32 s{sT+2}, s{sT+2}, 3
s_add_u32 s{sT+1}, s{sT+1}, s{sT+2}
s_add_u32 s{sT+1}, s{sT+1}, s{sKV}
s_add_u32 s{sT+1}, s{sT+1}, {K2OFF}
s_waitcnt lgkmcnt(0)
buffer_store_dwordx4 v[56:59], v{vL16}, {ws}, s{sT} offen sc1
buffer_store_dwordx2 v[60:61], v{vL16}, {ws}, s{sT+1} offen sc1
s_branch {lk3}
{lk4}:
v_min_u32 v5, 23, v{vJ}
v_lshlrev_b32 v5, 6, v5
v_lshl_add_u32 v5, v{vH}, 4, v5
v_add_u32 v5, {VT}, v5
ds_read_b128 v[56:59], v5
ds_read_b128 v[60:63], v5 offset:32
s_mul_i32 s{sT}, s{sRB}, 1344
s_add_u32 s{sT}, s{sT}, s{sKV}
s_add_u32 s{sT}, s{sT}, {VOFF}
s_waitcnt lgkmcnt(0)
buffer_store_dwordx4 v[56:59], v{vVO}, {ws}, s{sT} offen sc1
buffer_store_dwordx4 v[60:63], v{vVO}, {ws}, s{sT} offen offset:672 sc1
{lk3}:""")
TS("kv_stored")
def kvflag(n):
    l = E.label("Lkf")
    E(f"""s_cmp_lg_u32 s{sW}, 0
    s_cbranch_scc1 {l}
    s_lshl_b32 s{sT}, s2, 6
    s_add_u32 s{sT}, s{sT}, s{sFLK}
    s_waitcnt vmcnt({n})""")
    signal(sT)
    E(f"{l}:")
E(f"s_cmp_lg_u32 s{sMODE}, 0\ns_cbranch_scc1 L_q2")
WB = 56
wloads(2, 2); wloads(3, 3)
center()
E(f"""s_mul_i32 s{sT+8}, s{sCB}, 163840
s_mul_i32 s{sT+9}, s{sW}, 10240
s_add_u32 s{sT+8}, s{sT+8}, s{sT+9}
s_lshl_b32 s{sT+9}, s{sRB}, 10
s_add_u32 s{sT+8}, s{sT+8}, s{sT+9}
s_add_u32 s{sT+8}, s{sT+8}, {WS_WQF}""")
def p1m(k):
    b = WB + 16*(k % 2)
    for T in range(5):
        src_ = b+4*T if T < 4 else vF4+4*k
        E(f"{MF} {a(16*T,16)}, {v(src_,4)}, {v(G+4*k,4)}, {'0' if k == 0 else a(16*T,16)}")
for k in range(10):
    n = 15 if k < 7 else (15 - 5*(k-6))
    E(f"s_waitcnt vmcnt({n})")
    if k == 1: kvflag(15)
    if os.environ.get("KTS"): TS(f"k{k}")
    b = WB + 16*(k % 2)
    for T in range(4):
        for u in range(2):
            E(f"ds_read_b64_tr_b16 {v(b+4*T+2*u,2)}, v{vTa} offset:{(k%4)*5120 + u*1280 + T*80}")
    for u in range(2):
        E(f"ds_read_b64_tr_b16 {v(vF4+4*k+2*u,2)}, v{vTa+1} offset:{(k%4)*5120 + u*1280}")
    if k > 0: p1m(k-1)
    E("s_waitcnt lgkmcnt(0)")
    if k < 6: wloads(k % 4, k+4)
    l = E.label("Lfs")
    E(f"s_cmp_lg_u32 s{sRB}, {k}\ns_cbranch_scc1 {l}")
    for T in range(4):
        E(f"buffer_store_dwordx4 {v(b+4*T,4)}, v{vL16}, {ws}, s{sT+8} offen sc1\ns_add_u32 s{sT+8}, s{sT+8}, 40960")
    E(f"{l}:")
p1m(9)
E(f"""v_add_u32 v5, s{sWL}, v{vL16}
s_lshl_b32 s{sT}, s{sW}, 12
s_lshl_b32 s{sT+1}, s{sW}, 10
v_add_u32 v6, s{sT}, v{vL16}
v_add_u32 v7, {2*PREG}, v6
v_add_u32 v8, s{sT+1}, v{vL16}
v_add_u32 v9, {2*PREG}, v8
s_nop 1""")
for q in range(20):
    E(f"ds_write_b128 v5, {a(4*q,4)} offset:{q*1024}")
E("s_waitcnt lgkmcnt(0)\ns_barrier")
for wr in range(4):
    for qi in range(5):
        ad = (6 if wr < 2 else 7) if qi < 4 else (8 if wr < 2 else 9)
        off = (wr % 2)*PREG + (qi*1024 if qi < 4 else 16384)
        E(f"ds_read_b128 {v(16+(wr*5+qi)*4,4)}, v{ad} offset:{off}")
E("s_waitcnt lgkmcnt(10)")
for i in range(0, 20, 2): E(f"v_pk_add_f32 {v(96+i,2)}, {v(16+i,2)}, {v(36+i,2)}")
E("s_waitcnt lgkmcnt(5)")
for i in range(0, 20, 2): E(f"v_pk_add_f32 {v(96+i,2)}, {v(96+i,2)}, {v(56+i,2)}")
E("s_waitcnt lgkmcnt(0)")
for i in range(0, 20, 2): E(f"v_pk_add_f32 {v(96+i,2)}, {v(96+i,2)}, {v(76+i,2)}")
E("L_qpost:")
E(f"v_mul_f32 v6, {f2u(CSC)}, v{vAL}")
for i in range(0, 20, 2): E(f"v_pk_mul_f32 {v(96+i,2)}, {v(96+i,2)}, v[6:7] op_sel_hi:[1,0]")
for i in range(10): E(f"v_cvt_pk_bf16_f32 v{56+i}, v{96+2*i}, v{97+2*i}")
E(f"""s_lshl_b32 s{sT}, s{sW}, 11
s_add_u32 s{sT}, s{sT}, {QAREA}
s_lshl_b32 s{sT+1}, s{sW}, 9
s_add_u32 s{sT+1}, s{sT+1}, {QAREA+8192}
v_add_u32 v5, s{sT}, v{vL16}
v_lshl_add_u32 v6, v{vL}, 3, s{sT+1}
ds_write_b128 v5, v[56:59]
ds_write_b128 v5, v[60:63] offset:1024
ds_write_b64 v6, v[64:65]
s_lshl_b32 s{sT}, s{sW}, 14
s_add_u32 s{sKVO}, s{sT}, s{sKV}
s_lshl_b32 s{sT}, s{sW}, 13
s_add_u32 s{sT}, s{sT}, s{sKV}
s_add_u32 s{sKVO+4}, s{sT}, {K2OFF}
s_mul_i32 s{sT}, s{sW}, {16*1344}
s_add_u32 s{sT}, s{sT}, s{sKV}
s_add_u32 s{sKVO+6}, s{sT}, {VOFF}""")
for i in range(1, 4): E(f"s_add_u32 s{sKVO+i}, s{sKVO}, {4096*i}")
E(f"s_add_u32 s{sKVO+5}, s{sKVO+4}, 4096")
for i in range(1, 6): E(f"s_add_u32 s{sKVO+6+i}, s{sKVO+6}, {3*1344*i}")
def segoffs(base_imm, cbmul):
    E(f"""s_mul_i32 s{sT}, s{sCB}, {cbmul}
    s_mul_i32 s{sT+1}, s{sW}, 40960
    s_add_u32 s{sT}, s{sT}, {base_imm}
    s_add_u32 s{sT+1}, s{sT+1}, s{sT}""")
    for g in range(4):
        E(f"""s_add_u32 s{sT+2}, s{sW}, {g}
        s_and_b32 s{sT+2}, s{sT+2}, 3
        s_mul_i32 s{sT+2}, s{sT+2}, 10240
        s_add_u32 s{sSEG+g}, s{sT+2}, s{sT+1}""")
    E(f"s_mul_i32 s{sT+2}, s{sW}, 10240\ns_add_u32 s{sT}, s{sT}, 163840\ns_add_u32 s{sSEG+4}, s{sT}, s{sT+2}")
TS("q_done")
lw = E.label("Lkw")
E(f"s_cmp_lg_u32 s{sW}, 0\ns_cbranch_scc1 {lw}")
def flagloads(base):
    E(f"v_lshlrev_b32 v5, 6, v{vL}")
    for i in range(4): E(f"s_add_u32 s{sT+i}, s{sFLK}, {base+i*4096}")
    for i in range(4): E(f"buffer_load_dword v{8+i}, v5, {ws}, s{sT+i} offen sc1")
def flagcheck():
    E("s_waitcnt vmcnt(0)")
    for i in range(4): E(f"v_xor_b32 v{8+i}, s{sTAG}, v{8+i}")
    E("v_or_b32 v8, v8, v9\nv_or3_b32 v8, v8, v10, v11")
def body():
    flagloads(0); flagcheck()
spin(body, "v_cmp_ne_u32 vcc, 0, v8")
E(f"{lw}:\ns_waitcnt lgkmcnt(0)\ns_barrier")
TS("kv_ready")
stop(1)
def kvloads(t):
    L = []
    if t % 2 == 0:
        p = t // 2
        L.append(f"buffer_load_dwordx4 {a(aK2+4*p,4)}, v{vL16}, {ws}, s{sKVO+4+p//4} offen offset:{(p%4)*1024} sc1")
    L.append(f"buffer_load_dwordx4 {a(aK1+4*t,4)}, v{vL16}, {ws}, s{sKVO+t//4} offen offset:{(t%4)*1024} sc1")
    for m in range(2):
        L.append(f"buffer_load_dwordx4 {a(aV+8*t+4*m,4)}, v{vVO}, {ws}, s{sKVO+6+t//3} offen offset:{(t%3)*1344+m*672} sc1")
    return L
def qreads(r):
    q = vQ + 10*(r % 2)
    return [f"ds_read_b128 {v(q,4)}, v{vQa} offset:{r*128}", f"ds_read_b128 {v(q+4,4)}, v{vQa} offset:{r*128+1024}",
            f"ds_read_b64 {v(q+8,2)}, v{vQb} offset:{r*64}"]
def qk(T):
    r, t = T // 16, T % 16
    S = vS + 32*(T % 2); q = vQ + 10*(r % 2)
    return [f"{MF} {v(S,16)}, {a(aK1+4*t,4)}, {v(q,4)}, 0",
            f"{MF} {v(S+16,16)}, {a(aK1+4*t,4)}, {v(q+4,4)}, 0",
            f"v_mfma_f32_32x32x4_2b_bf16 {v(S,32)}, {a(aK2+2*t,2)}, {v(q+8,2)}, {v(S,32)}"]
def pv(T, q):
    t = T % 16; P = vP + 8*q; O = a(aO+16*q, 16)
    return [f"{MF} {O}, {a(aV+8*t,4)}, {v(P,4)}, {'0' if t == 0 else O}", f"{MF} {O}, {a(aV+8*t+4,4)}, {v(P+4,4)}, {O}"]
def sm(T, q):
    S = vS + 32*(T % 2) + 16*q; P = vP + 8*q; va = []
    for k in range(8):
        va += [f"v_exp_f32 v{S+2*k}, v{S+2*k}", f"v_exp_f32 v{S+2*k+1}, v{S+2*k+1}"]
        if k > 0: va.append(f"v_cvt_pk_bf16_f32 v{P+k-1}, v{S+2*k-2}, v{S+2*k-1}")
    va.append(f"v_cvt_pk_bf16_f32 v{P+7}, v{S+14}, v{S+15}")
    return va
def owrite(qt):
    return [f"ds_write_b128 v{vOST}, {a(aO+16*(qt%2)+4*g,4)} offset:{qt*3072+g*1024}" for g in range(3)]
nld = lambda u: 4 if u % 2 == 0 else 3
PD = 6
WOq = []
rel = {}
for t in range(16):
    fr = [aK1+4*t] + ([aK2+4*(t//2)] if t % 2 else []) + ([aV+8*(t-1), aV+8*(t-1)+4] if t > 0 else [])
    rel[t] = fr; WOq += fr
def wfrag_load(dst, j):
    seg, i = (4, j) if j < 10 else ((j-10)//10, (j-10) % 10)
    return f"buffer_load_dwordx4 {dst}, v{va3(i)}, {ws}, s{sSEG+seg} offen offset:{(i%4)*1024} sc1"
E.c("attention over this wave's 512 keys; exp uses the constant stand-in 0 for the row max, checked after the loop")
E(f"""s_lshl_b32 s{sT}, s{sRB}, 8
s_add_u32 s{sT}, s{sT}, {WS_FL+0x10000}
v_and_b32 v12, 3, v{vL}
v_lshlrev_b32 v12, 6, v12
buffer_load_dword v13, v12, {ws}, s{sT} offen sc1""")
for t in range(PD):
    for x in kvloads(t): E(x)
for x in qreads(0): E(x)
lne = E.label("Lne")
E(f"""s_or_b32 s{sT}, s2, s{sW}
s_cmp_lg_u32 s{sT}, 0
s_cbranch_scc1 {lne}
s_mov_b32 s{sT}, 0""")
signal(sT)
E(f"{lne}:")
E(f"s_waitcnt lgkmcnt(0)\ns_waitcnt vmcnt({sum(nld(u) for u in range(1, PD))})")
x = qk(0)
E(x[0] + "\n" + x[1] + "\ns_nop 7\ns_nop 1\n" + x[2] + "\ns_nop 15\ns_nop 3")
jw = 0
for T in range(64):
    if T in (16, 32, 48): TS(f"att{T}")
    n = qk(T+1) if T < 63 else [None]*3
    po = pv(T-1, 1) if T > 0 else [None]*2
    pe = pv(T, 0)
    ve, vo = sm(T, 0), sm(T, 1)
    pre = []; mid1 = []; mid2 = []; post = []
    if T < 16:
        if T + PD < 16: mid1 += kvloads(T + PD)
        if T + 1 < 16: pre.append(f"s_waitcnt vmcnt({sum(nld(u) for u in range(T+2, min(T+PD-1,15)+1))})")
    if T % 16 == 0 and T > 0:
        mid1 += owrite(2*(T//16) - 2); post += owrite(2*(T//16) - 1)
    if T % 16 == 8 and T < 48: mid1 += qreads(T//16 + 1)
    if T % 16 == 15 and T < 48: pre.append("s_waitcnt lgkmcnt(0)")
    if T >= 48:
        for r_ in rel[T-48]:
            if jw < 50: mid2.append(wfrag_load(a(r_, 4), jw)); jw += 1
    hook = None
    if T in (10, 28, 40, 47): hook = T
    for x in pre: E(x)
    seq = [(n[0], ve[0:6]), (po[0], ve[6:12]), (n[1], ve[12:18]), (po[1], ve[18:24]), (n[2], vo[0:10]), (pe[0], vo[10:17]), (pe[1], vo[17:24])]
    for i, (m, vs) in enumerate(seq):
        if m: E(m)
        for x in vs: E(x)
        if i == 1:
            for x in mid1: E(x)
        if i == 4:
            for x in mid2: E(x)
    for x in post: E(x)
    if hook:
        E(f"s_branch L_hook{T}\nL_hookret{T}:")
    if T == 47:
        segoffs(WS_WOF, 204800)
TS("att64")
for x in pv(63, 1): E(x)
E("s_nop 7\ns_nop 1")
for x in owrite(6): E(x)
E(f"""s_mul_i32 s{sT}, s{sW}, 6144
v_add_u32 v6, s{sT}, v{vL16}
v_add_u32 v7, {2*OST}, v6""")
for x in owrite(7): E(x)
E("s_waitcnt lgkmcnt(0)\ns_barrier\nL_ored:")
for wr in range(4):
    for qi in range(6):
        E(f"ds_read_b128 {v(16+(wr*6+qi)*4,4)}, v{6 if wr < 2 else 7} offset:{(wr%2)*OST + qi*1024}")
E(f"""s_mul_i32 s{sT+10}, s{sRB}, 40960
s_mul_i32 s{sT+1}, s{sCB}, 10240
s_add_u32 s{sT+9}, s{sT+10}, s{sT+1}
s_lshl_b32 s{sT+1}, s{sW}, 7
s_add_u32 s{sT+1}, s{sT+1}, s{sT+9}
s_add_u32 s{sT+1}, s{sT+1}, {WS_OB}
s_mul_i32 s{sT+2}, s{sW}, 10240
s_add_u32 s{sT+10}, s{sT+10}, s{sT+2}
v_bfe_u32 v5, v{vL}, 3, 2
v_mul_u32_u24 v5, 2560, v5
v_and_b32 v8, 7, v{vL}
v_lshl_add_u32 v5, v8, 4, v5
v_lshl_add_u32 v9, v{vH}, 9, v5
v_lshl_add_u32 v10, v{vH}, 30, v5
s_waitcnt lgkmcnt(0)
s_barrier""")
sum4q(16, 16, 24)
E(f"""v_mov_b32 v5, v24
v_mov_b32 v6, v24
v_mov_b32 v7, v36
v_mov_b32 v8, v36
s_nop 1
v_permlane32_swap_b32 v5, v6
v_permlane32_swap_b32 v7, v8
s_nop 1
v_rcp_f32 v6, v6
v_rcp_f32 v8, v8
s_nop 0""")
for i in range(12): E(f"v_mul_f32 v{16+i}, v{16+i}, v6")
for i in range(12): E(f"v_mul_f32 v{28+i}, v{28+i}, v8")
for i in range(4): E(f"v_cvt_pk_bf16_f32 v{56+i}, v{16+2*i}, v{17+2*i}")
for i in range(4): E(f"v_cvt_pk_bf16_f32 v{60+i}, v{28+2*i}, v{29+2*i}")
for i in range(2): E(f"v_cvt_pk_bf16_f32 v{64+i}, v{24+2*i}, v{25+2*i}")
for i in range(2): E(f"v_cvt_pk_bf16_f32 v{66+i}, v{36+2*i}, v{37+2*i}")
def ost(f):
    E(f"""buffer_store_dwordx4 v[56:59], v9, {ws}, s{sT+1} offen {f}
    buffer_store_dwordx4 v[60:63], v9, {ws}, s{sT+1} offen offset:1024 {f}
    buffer_store_dwordx4 v[64:67], v10, {ws}, s{sT+1} offen offset:2048 {f}""")
E(f"s_add_u32 s{sT}, s{sT+10}, {WS_OB}")
TS("o_ready")
pubgather(ost, sT)
TS("o_gathered")
stop(2)
def hgemm(w4, wm, write_bb, wait_fn=None):
    RB_ = 68
    A4 = a(240, 16); AM = v(96, 16)
    E(f"s_mul_i32 s{sT}, s{sW}, 10240\nv_add_u32 v10, s{sT}, v{vL16}")
    def rd(i): E(f"ds_read_b128 {v(RB_+4*((i-10)%7),4)}, v{6+i//10} offset:{(i%10)*1024}")
    for i in range(10):
        E(f"{MF} {A4}, {w4(i)}, {v(G+4*i,4)}, {'0' if i == 0 else A4}")
        if write_bb: E(f"ds_write_b128 v10, {v(G+4*i,4)} offset:{i*1024}")
        if 1 <= i <= 3:
            E(f"""s_add_u32 s{sT}, s{sW}, {i}
            s_and_b32 s{sT}, s{sT}, 3
            s_mul_i32 s{sT}, s{sT}, 10240
            v_add_u32 v{6+i}, s{sT}, v{vL16}""")
    for i in range(40):
        if wait_fn: wait_fn(i)
        if i >= 10:
            E(f"s_waitcnt lgkmcnt({min(5, 39-i)})")
        src_ = v(G+4*i, 4) if i < 10 else v(RB_+4*((i-10) % 7), 4)
        E(f"{MF} {AM}, {wm(i)}, {src_}, {'0' if i == 0 else AM}")
        if i == 0:
            E(f"""s_lshl_b32 s{sT}, s{sW}, 12
            s_add_u32 s{sT}, s{sT}, {P4}
            v_add_u32 v10, s{sT}, v{vL16}
            s_lshl_b32 s{sT}, s{sW}, 10
            s_add_u32 s{sT}, s{sT}, {P4}
            v_add_u32 v56, s{sT}, v{vL16}""")
        if i == 1 and write_bb: E("s_waitcnt lgkmcnt(0)\ns_barrier")
        if 2 <= i <= 7: rd(8 + i)
        if i == 8:
            for q in range(4): E(f"ds_write_b128 v10, {a(240+4*q,4)} offset:{q*1024}")
        if i >= 10 and i + 6 < 40: rd(i + 6)
        if i == 33: E("s_barrier")
        if i == 34:
            pass
    for wr in range(4): E(f"ds_read_b128 {v(68+4*wr,4)}, v56 offset:{wr*4096}")
    E("s_waitcnt lgkmcnt(0)\ns_barrier")
    sum4q(112, 68, 4)
E.c("output projection + residual")
hgemm(lambda i: a(WOq[i], 4), lambda i: a(WOq[10+i], 4), True)
E("s_nop 1")
for i in range(10):
    E(f"""v_lshlrev_b32 v5, 16, v{vXR+i}
    v_and_b32 v6, 0xffff0000, v{vXR+i}
    v_add_f32 v5, v5, v{96+2*i}
    v_add_f32 v6, v6, v{97+2*i}
    v_cvt_pk_bf16_f32 v{vXR+i}, v5, v6""")
E(f"""s_mul_i32 s{sT}, s{sW}, 2560
s_add_u32 s{sT}, s{sT}, s{sT+9}
s_add_u32 s{sT}, s{sT}, {WS_VB}
v_lshlrev_b32 v7, 4, v{vJ}
v_lshl_add_u32 v7, v{vH}, 3, v7
s_add_u32 s{sT+1}, s{sT+10}, {WS_VB}""")
def vst(f):
    E(f"""buffer_store_dwordx4 {v(vXR,4)}, v{vL16}, {ws}, s{sT} offen {f}
    buffer_store_dwordx4 {v(vXR+4,4)}, v{vL16}, {ws}, s{sT} offen offset:1024 {f}
    buffer_store_dwordx2 {v(vXR+8,2)}, v7, {ws}, s{sT} offen offset:2048 {f}""")
TS("v_ready")
pubgather(vst, sT+1)
TS("v_gathered")
E(f"""s_mov_b32 s{sMODE}, 1
s_mov_b64 s[{sSP}:{sSP+1}], 0
s_branch L_lnkv
L_ln_ret1:""")
E.c("router score, the two best tokens of this row block are published as candidates")
E(f"""v_fma_f32 v7, -v{vMU}, v{vCR}, v81
v_mul_f32 v7, v7, v{vRS}
s_lshl_b32 s{sT}, s{sRB}, 5
s_sub_u32 s{sT}, 2047, s{sT}
s_mov_b32 s{sT+1}, 0xfffff800
v_ashrrev_i32 v6, 31, v7
v_or_b32 v6, 0x80000000, v6
v_xor_b32 v6, v6, v7
v_sub_u32 v5, s{sT}, v{vJ}
v_and_or_b32 v{vKEY}, v6, s{sT+1}, v5""")
wavemax(vKEY, sT+8, 2)
E(f"v_cmp_eq_u32 s[{sEX}:{sEX+1}], s{sT+8}, v{vKEY}\ns_nop 1\nv_cndmask_b32 v8, v{vKEY}, 0, s[{sEX}:{sEX+1}]")
wavemax(8, sT+9, 2)
lr = E.label("Lr")
E(f"""v_cmp_eq_u32 vcc, s{sT+9}, v{vKEY}
s_mul_i32 s{sT}, s{sRB}, 2560
s_mul_i32 s{sT+1}, s{sCB}, 320
s_add_u32 s{sT}, s{sT}, s{sT+1}
s_mul_i32 s{sT+1}, s{sW}, 80
s_add_u32 s{sT}, s{sT}, s{sT+1}
s_add_u32 s{sT}, s{sT}, s{sSM}
s_add_u32 s{sT}, s{sT}, {SM_CAND}
v_cndmask_b32 v5, 0, 1, vcc
s_or_b64 exec, vcc, s[{sEX}:{sEX+1}]
v_mul_u32_u24 v6, 1280, v5
v_lshl_add_u32 v8, v{vH}, 4, v6
v_lshl_add_u32 v9, v{vH}, 3, v6
buffer_store_dwordx4 {v(vXR,4)}, v8, {ws}, s{sT} offen sc1
buffer_store_dwordx4 {v(vXR+4,4)}, v8, {ws}, s{sT} offen offset:32 sc1
buffer_store_dwordx2 {v(vXR+8,2)}, v9, {ws}, s{sT} offen offset:64 sc1
s_or_b32 s{sT}, s{sCB}, s{sW}
s_cmp_lg_u32 s{sT}, 0
s_cbranch_scc1 {lr}
v_mov_b32 v56, v{vKEY}
v_mov_b32 v57, v{vMU}
v_mov_b32 v58, v{vRS}
v_mov_b32 v59, v7
v_lshlrev_b32 v5, 4, v5
v_lshl_add_u32 v5, v{vH}, 30, v5
s_lshl_b32 s{sT}, s{sRB}, 5
s_add_u32 s{sT}, s{sT}, s{sSM}
buffer_store_dwordx4 v[56:59], v5, {ws}, s{sT} offen sc1
{lr}:
s_mov_b64 exec, -1""")
TS("r_stored")
lq = E.label("Lq")
E(f"s_cmp_lg_u32 s{sLAY}, 0\ns_cbranch_scc1 {lq}")
segoffs(WS_WQF, 163840)
for i in range(NPRE, 40): E(wfrag_load(a(4*(i-NPRE), 4), 10+i))
E(f"{lq}:")
E(f"v_mul_f32 v7, v{vMU}, v{vRS}\nv_add_f32 v8, 1.0, v{vRS}")
for i in range(10):
    E(f"""v_lshlrev_b32 v5, 16, v{vXR+i}
    v_and_b32 v6, 0xffff0000, v{vXR+i}
    v_fma_f32 v5, v5, v8, -v7
    v_fma_f32 v6, v6, v8, -v7
    v_cvt_pk_bf16_f32 v{vXR+i}, v5, v6""")
U = 56
E(f"v_mov_b32 v5, 0x3f803f80\nv_cmp_eq_u32 vcc, 2, v{vJ}\ns_nop 1\nv_cndmask_b32 v{U}, 0, v5, vcc")
for i in range(1, 40): E(f"v_mov_b32 v{U+i}, v{U}")
E.c("router top-2 over the 128 candidates")
def body():
    E(f"""buffer_load_dwordx4 v[96:99], v{vL16}, {ws}, s{sSM} offen sc1
    buffer_load_dwordx4 v[100:103], v{vL16}, {ws}, s{sSM} offen offset:1024 sc1
    s_waitcnt vmcnt(0)""")
    maxtree(range(96, 104), 5)
spin(body, "v_cmp_eq_u32 vcc, -1, v5")
TS("r_gathered")
E("v_max_u32 v8, v96, v100\nv_min_u32 v9, v96, v100")
wavemax(8, sK1)
E(f"v_cmp_eq_u32 vcc, s{sK1}, v8\ns_nop 1\nv_cndmask_b32 v8, v8, v9, vcc")
wavemax(8, sK2)
for K_, I_, M_, S_, R_, O_ in ((sK1, sI1, sM1, sS1, sR1, sO1), (sK2, sI2, sM2, sS2, sR2, sO2)):
    E(f"""v_cmp_eq_u32 vcc, s{K_}, v100
    v_cmp_eq_u32 s[{sEX}:{sEX+1}], s{K_}, v96
    s_and_b32 s{I_}, s{K_}, 2047
    s_sub_u32 s{I_}, 2047, s{I_}
    v_cndmask_b32 v5, v97, v101, vcc
    v_cndmask_b32 v6, v98, v102, vcc
    v_cndmask_b32 v7, v99, v103, vcc
    s_cmp_lg_u64 vcc, 0
    s_cselect_b32 s{sT+1}, 64, 0
    s_or_b64 vcc, vcc, s[{sEX}:{sEX+1}]
    s_ff1_i32_b64 s{sT}, vcc
    s_add_u32 s{sT+1}, s{sT+1}, s{sT}
    s_mul_i32 s{O_}, s{sT+1}, 1280
    s_nop 1
    v_readlane_b32 s{M_}, v5, s{sT}
    v_readlane_b32 s{S_}, v6, s{sT}
    v_readlane_b32 s{R_}, v7, s{sT}""")
TS("top2")
def sel2(d, a_, b_, mask="vcc"):
    E(f"v_mov_b32 v{d}, s{a_}\nv_mov_b32 v10, s{b_}\nv_cndmask_b32 v{d}, v{d}, v10, {mask}")
E(f"""s_cmp_ge_u32 s2, 128
s_cbranch_scc1 L_down
s_cmp_ge_u32 s2, 108
s_cbranch_scc1 L_ffn_done""")
E.c("FFN gate/up for the two routed tokens (LayerNorm folded in: rs*(v.W - mu*colsum(W)))")
E(f"""v_cmp_eq_u32 vcc, 1, v{vJ}
s_mul_i32 s{sT+2}, s{sW}, 320
s_add_u32 s{sT+2}, s{sT+2}, s{sSM}
s_add_u32 s{sT+2}, s{sT+2}, {SM_CAND}""")
sel2(7, sO1, sO2)
E(f"""v_lshl_add_u32 v7, v{vH}, 4, v7
s_mov_b32 s{sEX}, 3
s_mov_b32 s{sEX+1}, 3
s_mov_b64 exec, s[{sEX}:{sEX+1}]""")
def uloads():
    for k in range(10):
        E(f"buffer_load_dwordx4 {v(U+4*k,4)}, v7, {ws}, s{sT+2} offen offset:{k*32} sc1")
uloads()
E(f"""s_mov_b64 exec, -1
s_mul_i32 s{sT}, s{sW}, 10240
s_add_u32 s{sT}, s{sT}, {FFNW}
v_bfe_u32 v5, v{vL}, 2, 2
v_lshl_add_u32 v5, v{vH}, 3, v5
v_lshlrev_b32 v5, 5, v5
v_and_b32 v6, 3, v{vL}
v_lshl_add_u32 v5, v6, 3, v5
v_bfe_u32 v6, v{vL}, 4, 1
v_mul_u32_u24 v6, 5120, v6
v_add3_u32 v5, v5, v6, s{sT}""")
for k in range(10):
    for u in range(2):
        E(f"ds_read_b64_tr_b16 {a(160+4*k+2*u,2)}, v5 offset:{k*512+u*128}")
E(f"""v_bfe_u32 v5, v{vL}, 4, 1
v_cmp_eq_u32 vcc, 1, v5""")
sel2(8, sM1, sM2); sel2(9, sS1, sS2)
lu1 = E.label("Lu"); lu2 = E.label("Lu")
E(f"s_mov_b32 s{sT+11}, 0x80000\n{lu1}:\ns_waitcnt vmcnt(0)")
maxtree2(range(U, U+40), 5, 6)
E(f"""v_cmp_eq_u32 vcc, -1, v5
s_sub_u32 s{sT+11}, s{sT+11}, 1
s_cbranch_scc1 {lu2}
s_nop 2
s_cbranch_vccz {lu2}
s_mov_b64 exec, s[{sEX}:{sEX+1}]""")
uloads()
E(f"""s_mov_b64 exec, -1
s_branch {lu1}
{lu2}:
s_lshl_b32 s{sT}, s{sW}, 12
s_add_u32 s{sT}, s{sT}, {FP}
v_add_u32 v5, s{sT}, v{vL16}
s_waitcnt lgkmcnt(0)""")
for k in range(10):
    E(f"{MF} v[96:111], {a(160+4*k,4)}, {v(U+4*k,4)}, {'0' if k == 0 else 'v[96:111]'}")
E("s_nop 7\ns_nop 3")
for g in range(4): E(f"ds_write_b128 v5, {v(96+4*g,4)} offset:{g*1024}")
E(f"""s_waitcnt lgkmcnt(0)
s_barrier
s_cmp_lg_u32 s{sW}, 0
s_cbranch_scc1 L_ffn_done
v_bfe_u32 v5, v{vL}, 3, 1
v_lshlrev_b32 v5, 10, v5
v_bfe_u32 v6, v{vL}, 2, 1
v_lshl_add_u32 v5, v6, 9, v5
v_and_b32 v7, 3, v{vL}
v_lshl_add_u32 v5, v7, 2, v5
v_add_u32 v5, {FP}, v5
v_bfe_u32 v6, v{vL}, 4, 1
v_lshl_add_u32 v7, v6, 4, v5""")
for wr in range(4):
    E(f"""ds_read_b32 v{96+wr}, v7 offset:{wr*4096}
    ds_read_b32 v{100+wr}, v7 offset:{wr*4096+2048}
    ds_read_b32 v{104+wr}, v5 offset:{wr*4096+32}
    ds_read_b32 v{108+wr}, v5 offset:{wr*4096+2048+32}""")
E("s_waitcnt lgkmcnt(0)")
for b in (96, 100, 104, 108):
    E(f"v_add_f32 v{b}, v{b}, v{b+1}\nv_add_f32 v{b+2}, v{b+2}, v{b+3}\nv_add_f32 v{b}, v{b}, v{b+2}")
E(f"""v_fma_f32 v96, -v8, v104, v96
v_fma_f32 v100, -v8, v108, v100
v_mul_f32 v96, v96, v9
v_mul_f32 v100, v100, v9
v_mul_f32 v97, {f2u(-L2E)}, v96
v_exp_f32 v97, v97
v_mul_f32 v96, v96, v100
v_add_f32 v97, 1.0, v97
v_rcp_f32 v97, v97
v_mul_u32_u24 v6, 3456, v6
v_mul_f32 v96, v96, v97
v_and_b32 v7, 15, v{vL}
v_lshl_add_u32 v6, v7, 1, v6
v_mov_b32_dpp v97, v96 quad_perm:[1,0,3,2] row_mask:0xf bank_mask:0xf
s_nop 0
v_cvt_pk_bf16_f32 v96, v96, v97
s_lshl_b32 s{sT}, s2, 5
s_add_u32 s{sT}, s{sT}, s{sSM}
s_add_u32 s{sT}, s{sT}, {SM_H}
s_mov_b64 exec, 0x55555555
buffer_store_dword v96, v6, {ws}, s{sT} offen sc1
s_mov_b64 exec, -1""")
TS("up_done")
E("s_branch L_ffn_done")
E(f"""L_down:
s_cmp_ge_u32 s2, 208
s_cbranch_scc1 L_ffn_done""")
E.c("FFN down projection, 8 columns per workgroup")
E(f"""s_mul_i32 s{sT}, s{sW}, 7168
s_add_u32 s{sT}, s{sT}, {FFNW}
v_bfe_u32 v5, v{vL}, 2, 2
v_lshl_add_u32 v5, v{vH}, 3, v5
v_bfe_u32 v6, v{vL}, 4, 1
v_lshl_add_u32 v5, v6, 5, v5
v_bfe_u32 v6, v{vL}, 1, 1
v_lshl_add_u32 v5, v6, 4, v5
v_lshlrev_b32 v5, 4, v5
v_and_b32 v6, 1, v{vL}
v_lshl_add_u32 v5, v6, 3, v5
v_add_u32 v5, s{sT}, v5""")
for k in range(7):
    for u in range(2):
        E(f"ds_read_b64_tr_b16 {a(160+4*k+2*u,2)}, v5 offset:{k*1024+u*64}")
E(f"""v_bfe_u32 v5, v{vL}, 3, 1
v_cmp_eq_u32 vcc, 1, v5""")
sel2(8, sM1, sM2); sel2(9, sS1, sS2); sel2(104, sR1, sR2); sel2(107, sI1, sI2); sel2(105, sO1, sO2)
E(f"""v_and_b32 v7, 7, v{vL}
v_lshl_add_u32 v105, v7, 1, v105
s_sub_u32 s{sT+3}, s2, 128
s_lshl_b32 s{sT+4}, s{sT+3}, 4
s_add_u32 s{sT+4}, s{sT+4}, s{sSM}
s_add_u32 s{sT+4}, s{sT+4}, {SM_CAND}
v_mul_u32_u24 v107, 1280, v107
v_bfe_u32 v5, v{vL}, 2, 1
v_mul_u32_u24 v5, 3456, v5
v_and_b32 v6, 3, v{vL}
v_lshl_add_u32 v5, v6, 5, v5
v_lshl_add_u32 v5, v{vH}, 4, v5
v_lshrrev_b32 v6, 3, v{vJ}
v_lshl_add_u32 v10, v6, 28, v5
s_mul_i32 s{sT}, s{sW}, 896
s_add_u32 s{sT}, s{sT}, s{sSM}
s_add_u32 s{sT}, s{sT}, {SM_H}
s_cmp_eq_u32 s{sW}, 3
s_cselect_b32 s{sT+1}, {OOB}, s{sT}
v_mul_f32 v104, {f2u(-L2E)}, v104
v_exp_f32 v104, v104
s_lshl_b32 s{sT+2}, s{sW}, 12
v_add_f32 v104, 1.0, v104
v_rcp_f32 v104, v104
s_add_u32 s{sT+2}, s{sT+2}, {FP}""")
def body():
    for k in range(7):
        E(f"buffer_load_dwordx4 {v(U+4*k,4)}, v10, {ws}, s{sT+(1 if k == 6 else 0)} offen offset:{k*128} sc1")
    E(f"buffer_load_ushort v106, v105, {ws}, s{sT+4} offen sc1")
    E("s_waitcnt vmcnt(0)")
    maxtree2(range(U, U+28), 5, 6)
    E("v_lshl_or_b32 v6, v106, 16, v106\nv_max_u32 v5, v5, v6")
spin(body, "v_cmp_eq_u32 vcc, -1, v5")
TS("h_gathered")
E(f"v_add_u32 v5, s{sT+2}, v{vL16}\ns_waitcnt lgkmcnt(0)")
for k in range(7):
    E(f"{MF} v[84:99], {a(160+4*k,4)}, {v(U+4*k,4)}, {'0' if k == 0 else 'v[84:99]'}")
E("s_nop 7\ns_nop 3")
for g in range(4): E(f"ds_write_b128 v5, {v(84+4*g,4)} offset:{g*1024}")
ldo = E.label("Ldo")
E(f"""s_waitcnt lgkmcnt(0)
s_barrier
s_cmp_lg_u32 s{sW}, 0
s_cbranch_scc1 L_ffn_done
v_bfe_u32 v5, v{vL}, 3, 1
v_lshlrev_b32 v5, 6, v5
v_bfe_u32 v6, v{vL}, 2, 1
v_lshl_add_u32 v5, v6, 9, v5
v_and_b32 v6, 3, v{vL}
v_lshl_add_u32 v5, v6, 2, v5
v_add_u32 v5, {FP}, v5""")
for wr in range(4):
    for kq in range(4):
        E(f"ds_read_b32 v{U+4*wr+kq}, v5 offset:{wr*4096+kq*1024+kq*16}")
E(f"""v_lshlrev_b32 v106, 16, v106
v_sub_f32 v105, v106, v8
v_fmac_f32 v106, v105, v9
v_and_b32 v6, 7, v{vL}
s_lshl_b32 s{sT}, s{sT+3}, 4
s_waitcnt lgkmcnt(0)""")
sum8(U, U); sum8(U+8, U+8)
E(f"""v_add_f32 v{U}, v{U}, v{U+8}
v_fmac_f32 v106, v{U}, v104
v_lshlrev_b32 v7, 1, v6
s_cmp_lg_u32 s{sLAY}, 0
v_mov_b32_dpp v105, v106 quad_perm:[1,0,3,2] row_mask:0xf bank_mask:0xf
s_nop 0
v_cvt_pk_bf16_f32 v106, v106, v105
s_cbranch_scc1 {ldo}
v_bfe_u32 v5, v{vL}, 3, 1
v_mul_u32_u24 v5, 1280, v5
v_add_u32 v7, v5, v7
s_add_u32 s{sT}, s{sT}, s{sSM}
s_add_u32 s{sT}, s{sT}, {SM_XS}
s_mov_b64 exec, 0x5555
buffer_store_dword v106, v7, {ws}, s{sT} offen sc1
s_mov_b64 exec, -1
s_branch L_ffn_done
{ldo}:""")
srd(XO, pOUT, 2621440)
E(f"""v_add_u32 v7, v7, v107
s_mov_b64 exec, 0x5555
buffer_store_dword v106, v7, s[{XO}:{XO+3}], s{sT} offen
s_mov_b64 exec, -1""")
TS("down_done")
E("L_ffn_done:")
E(f"""s_lshl_b32 s{sT}, s{sRB}, 5
v_add_u32 v5, s{sT}, v{vJ}
v_cmp_eq_u32 vcc, s{sI1}, v5
v_cmp_eq_u32 s[{sEX}:{sEX+1}], s{sI2}, v5
s_nop 3
s_or_b64 s[{sSP}:{sSP+1}], vcc, s[{sEX}:{sEX+1}]
s_mul_i32 s{sT+4}, s{sCB}, 320
s_mul_i32 s{sT+5}, s{sW}, 80
s_add_u32 s{sT+4}, s{sT+4}, s{sT+5}
s_cmp_lg_u32 s{sLAY}, 0
s_cbranch_scc1 L_final
s_mov_b32 s{sMODE}, 2
s_mov_b32 s{sLAY}, 1
s_add_u32 s{sKV}, s{sKV}, 0x40000
s_add_u32 s{sFLK}, s{sFLK}, 0x4000
s_add_u32 s{sT+6}, s{sSM}, {SM_XS}
s_add_u32 s{sSM}, s{sSM}, {SM_L}
s_cmp_eq_u64 s[{sSP}:{sSP+1}], 0
s_cbranch_scc1 L_kvpost
v_cndmask_b32 v5, 0, 1, s[{sEX}:{sEX+1}]
v_mul_u32_u24 v5, 1280, v5
v_lshl_add_u32 v7, v{vH}, 3, v5
v_lshl_add_u32 v8, v{vH}, 4, v5
s_mul_i32 s{sT}, s{sW}, 320
s_add_u32 s{sT}, s{sT}, s{sT+6}
s_add_u32 s{sT+4}, s{sT+4}, s{sT+6}
s_mov_b64 exec, s[{sSP}:{sSP+1}]""")
def body():
    for k in range(10):
        E(f"buffer_load_dwordx4 {v(G+4*k,4)}, v8, {ws}, s{sT} offen offset:{k*32} sc1")
    E(f"""buffer_load_dwordx4 {v(vXR,4)}, v8, {ws}, s{sT+4} offen sc1
    buffer_load_dwordx4 {v(vXR+4,4)}, v8, {ws}, s{sT+4} offen offset:32 sc1
    buffer_load_dwordx2 {v(vXR+8,2)}, v7, {ws}, s{sT+4} offen offset:64 sc1
    s_waitcnt vmcnt(0)""")
    maxtree2(list(range(G, G+40)) + list(range(vXR, vXR+10)), 5, 6)
spin(body, "v_cmp_eq_u32 vcc, -1, v5")
E("s_mov_b64 exec, -1\ns_barrier\ns_branch L_lnkv")
E("L_q2:")
center()
def wf(i):
    if i == 3: kvflag(0)
hgemm(lambda i: v(vF4+4*i, 4), lambda i: v(vWP+4*i, 4) if i < NPRE else a(4*(i-NPRE), 4), True, wf)
E("s_branch L_qpost")
E("L_final:")
srd(XO, pOUT, 2621440)
E(f"""s_mul_i32 s{sT}, s{sRB}, 40960
s_add_u32 s{sT+4}, s{sT+4}, s{sT}
v_mul_u32_u24 v5, 1280, v{vJ}
v_lshl_add_u32 v6, v{vH}, 3, v5
v_lshl_add_u32 v5, v{vH}, 4, v5
s_andn2_b64 exec, exec, s[{sSP}:{sSP+1}]
buffer_store_dwordx4 {v(vXR,4)}, v5, s[{XO}:{XO+3}], s{sT+4} offen
buffer_store_dwordx4 {v(vXR+4,4)}, v5, s[{XO}:{XO+3}], s{sT+4} offen offset:32
buffer_store_dwordx2 {v(vXR+8,2)}, v6, s[{XO}:{XO+3}], s{sT+4} offen offset:64
s_mov_b64 exec, -1""")
TS("end")
E("L_dump:")
if PROF:
    E(f"""s_lshl_b32 s{sT}, s2, 2
    s_add_u32 s{sT}, s{sT}, s{sW}
    s_lshl_b32 s{sT}, s{sT}, 8
    s_add_u32 s{sT}, s{sT}, 0x1000000
    v_lshlrev_b32 v5, 2, v{vL}
    buffer_store_dword v253, v5, {ws}, s{sT} offen
    s_add_u32 s{sT}, s{sT}, 0x100000
    buffer_store_dword v252, v5, {ws}, s{sT} offen""")
    open(sys.argv[1] + ".ts", "w").write("\n".join(TSN))
E("L_exit2:\ns_endpgm")

E("L_hook10:")
E.c("poison this cluster's hand-off buffers with the not-yet-written marker (plain stores only if the whole cluster shares one L2)")
E(f"""v_mov_b32 v8, -1
v_mov_b32 v9, -1
v_mov_b32 v10, -1
v_mov_b32 v11, -1
s_cmp_lg_u32 s{sLAY}, 0
s_cbranch_scc1 L_h10b
s_lshl_b32 s{sT+2}, s{sRB}, 8
s_add_u32 s{sT+2}, s{sT+2}, {WS_FL+0x10000}
s_lshr_b32 s{sT+3}, s{sLOC}, 4
s_mov_b32 s{sT+11}, 0x80000
L_h10s:
v_lshrrev_b32 v5, 4, v13
v_cmp_ne_u32 vcc, s{sT+3}, v5
s_sub_u32 s{sT+11}, s{sT+11}, 1
s_cbranch_scc1 L_h10t
s_nop 2
s_cbranch_vccz L_h10t
buffer_load_dword v13, v12, {ws}, s{sT+2} offen sc1
s_waitcnt vmcnt(0)
s_branch L_h10s
L_h10t:
v_cmp_ne_u32 vcc, s{sLOC}, v13
v_bfe_u32 v5, v{vL}, 2, 2
v_lshl_add_u32 v5, v{vH}, 3, v5
v_lshlrev_b32 v5, 6, v5
v_bfe_u32 v6, v{vL}, 4, 1
s_cmp_eq_u64 vcc, 0
s_cselect_b32 s{sLOC}, 1, 0
v_and_b32 v7, 3, v{vL}
v_lshrrev_b32 v12, 1, v7
v_and_b32 v13, 1, v7
v_lshl_add_u32 v12, v13, 1, v12
s_cmp_eq_u32 s{sTT}, 4
s_cselect_b64 vcc, -1, 0
s_add_u32 s{sT}, s{sWL}, {WOPREP}
v_cndmask_b32 v7, v12, v7, vcc
v_lshl_add_u32 v7, v6, 2, v7
v_lshl_add_u32 v5, v7, 3, v5
v_add_u32 v5, s{sT}, v5
ds_read_b64_tr_b16 v[208:209], v5
ds_read_b64_tr_b16 v[210:211], v5 offset:256
s_mul_i32 s{sT}, s{sG}, 384
s_add_u32 s{sT}, s{sT}, {WS_SM}
s_mov_b64 exec, 0xffffff
buffer_store_dwordx4 v[8:11], v{vL16}, {ws}, s{sT} offen sc1
s_mov_b64 exec, -1
s_cmp_ge_u32 s{sG}, 800
s_cbranch_scc1 L_h10b
s_lshl_b32 s{sT}, s{sG}, 10
s_add_u32 s{sT}, s{sT}, {WS_WOF}
s_waitcnt lgkmcnt(0)
buffer_store_dwordx4 v[208:211], v{vL16}, {ws}, s{sT} offen sc1
L_h10b:
s_mul_i32 s{sT}, s{sRB}, 40960
s_mul_i32 s{sT+1}, s{sW}, 10240
s_add_u32 s{sT}, s{sT}, s{sT+1}
s_and_b32 s{sT+1}, s{sCB}, 1
s_mul_i32 s{sT+1}, s{sT+1}, 5120
s_add_u32 s{sT}, s{sT}, s{sT+1}
s_lshr_b32 s{sT+1}, s{sCB}, 1
s_mul_i32 s{sT+1}, s{sT+1}, {WS_VB-WS_OB}
s_add_u32 s{sT}, s{sT}, s{sT+1}
s_add_u32 s{sT}, s{sT}, {WS_OB}""")
def pst(f):
    for i in range(5):
        E(f"buffer_store_dwordx4 v[8:11], v{va3(i)}, {ws}, s{sT} offen offset:{(i%4)*1024} {f}")
dual(pst)
E(f"""s_branch L_hookret10
L_hook28:
s_waitcnt vmcnt(0) lgkmcnt(0)
s_barrier
s_cmp_lg_u32 s{sW}, 0
s_cbranch_scc1 L_h28a
s_lshl_b32 s{sT}, s2, 6
s_add_u32 s{sT}, s{sT}, s{sFLK}
s_add_u32 s{sT}, s{sT}, 0x8000""")
signal(sT)
E(f"""L_h28a:
s_cmp_lg_u32 s{sLAY}, 0
s_cbranch_scc1 L_hookret28
s_cmp_ge_u32 s2, 128
s_cbranch_scc1 L_h17d
s_cmp_ge_u32 s2, 108
s_cbranch_scc1 L_hookret28""")
srd(WG, pG, 2211840); srd(T2, pU, 2211840)
E(f"""s_mul_i32 s{sT}, s{sW}, {160*3456}
s_lshl_b32 s{sT+1}, s2, 5
s_add_u32 s{sT}, s{sT}, s{sT+1}
v_lshrrev_b32 v5, 1, v{vL}
v_mul_u32_u24 v5, 3456, v5
v_and_b32 v6, 1, v{vL}
v_lshl_add_u32 v5, v6, 4, v5
s_mul_i32 s{sT+1}, s{sW}, 10240
s_add_u32 m0, s{sT+1}, {FFNW}
s_nop 0""")
for b in range(5):
    E(f"""buffer_load_dwordx4 v5, s[{WG}:{WG+3}], s{sT} offen lds
    s_add_u32 m0, m0, 5120
    s_nop 0
    buffer_load_dwordx4 v5, s[{T2}:{T2+3}], s{sT} offen lds
    s_sub_u32 m0, m0, 4096
    s_add_u32 s{sT}, s{sT}, 110592""")
E(f"""s_branch L_hookret28
L_h17d:
s_cmp_ge_u32 s2, 208
s_cbranch_scc1 L_hookret28""")
srd(WG, pD, 2211840)
E(f"""s_sub_u32 s{sT}, s2, 128
s_lshl_b32 s{sT}, s{sT}, 4
v_mul_u32_u24 v5, 1280, v{vL}
v_add_u32 v5, s{sT}, v5
s_mul_i32 s{sT+1}, s{sW}, 7168
s_add_u32 m0, s{sT+1}, {FFNW}
s_mul_i32 s{sT}, s{sW}, {7*81920}""")
for k in range(7):
    E(f"""buffer_load_dwordx4 v5, s[{WG}:{WG+3}], s{sT} offen lds
    s_add_u32 m0, m0, 1024
    s_add_u32 s{sT}, s{sT}, 81920
    s_min_u32 s{sT}, s{sT}, {26*81920}""")
E("s_branch L_hookret28\nL_hook40:")
flagloads(0x8000)
E(f"""s_branch L_hookret40
L_hook47:
s_mov_b32 s{sT+11}, 0x80000
L_h46a:""")
flagcheck()
E(f"""v_cmp_ne_u32 vcc, 0, v8
s_sub_u32 s{sT+11}, s{sT+11}, 1
s_cbranch_scc1 L_h46b
s_nop 2
s_cbranch_vccz L_h46b""")
flagloads(0x8000)
E(f"""s_branch L_h46a
L_h46b:
s_cmp_lg_u32 s{sLAY}, 0
s_cbranch_scc1 L_hookret47""")
segoffs(WS_WQF, 163840)
for i in range(NPRE): E(wfrag_load(v(vWP+4*i, 4), 10+i))
E(f"""s_branch L_hookret47
.section .rodata,"a"
.p2align 6
.amdhsa_kernel {NAME}_kernel
.amdhsa_next_free_vgpr 512
.amdhsa_next_free_sgpr 102
.amdhsa_accum_offset 256
.amdhsa_group_segment_fixed_size 0
.amdhsa_kernarg_size 104
.amdhsa_user_sgpr_count 2
.amdhsa_user_sgpr_kernarg_segment_ptr 1
.amdhsa_system_sgpr_workgroup_id_x 1
.end_amdhsa_kernel""")
open(sys.argv[1], "w").write(E.text())
```

```python
import sys, math, os
from asmlib import *
NAME = "interleave_layers__grouped_kv_mqa__moe_arch_mod__prompt"
STOP = int(sys.argv[2]) if len(sys.argv) > 2 else 99
PROF = len(sys.argv) > 3
E = Asm()
WS_FL = 0x1000; WS_KV = 0x40000; WS_WQF = 0x100000; WS_WOF = 0x1C8000; WS_SM = 0x290000; WS_OB = 0x300000; WS_VB = 0x580000
K2OFF = 0x10000; VOFF = 0x18000
SM_H = 0x1000; SM_XS = 0x3000; SM_LK1 = 0x4000; SM_LK2 = 0x4100; SM_LV = 0x4200; SM_QS = 0x5000; SM_CAND = 0x8000; SM_L = 0x30000
OOB = 0x40000000
PREG = 36864; CONST = 6400; RING = 12800; WOPREP = 33280; CSO = 34304
OST = 24576
BB = 0; P4 = 40960; FP = 61440; FFNW = 98304
QAREA = 147456; P6 = 147456; STAT1 = 159744; STAT2 = 160768; VT = 161792; TOP = 163328
LDS_BYTES = 163840
sW, sRB, sCB, sTAG, sLAY = 3, 4, 5, 6, 7
WS, XO, WG, T2 = 8, 12, 16, 20
sMODE, sWL, sI1, sI2, sK1, sK2 = 24, 25, 26, 27, 28, 29
sSP = 30
sEX = 32
sSEG = 34
sKVO = 40
sT = 52
sKV, sSM, sFLK, sLOC, sF = 64, 65, 66, 39, 67
sROLE = 24; sSQ = 29; FPC = 139264; vPI = 251; vOT = 250
sDS, sDT, sD5 = 25, 28, 68
sM1, sM2, sS1, sS2, sO1, sO2, sR1, sR2 = 78, 79, 90, 91, 100, 101, 0, 1
pX, pWQ, pWK, pWV, pWO, pWR, pG, pU, pD, pOUT, pDBG, pWS = 68, 70, 72, 74, 76, 80, 82, 84, 86, 88, 90, 92
vL, vJ, vH, vL16 = 1, 2, 3, 4
vAL, vMU, vRS = 11, 12, 13
vOST, vVO = 14, 15
vS = 16; vP = 80; vQ = 96; vXR = 116; vQa = 126; vQb = 127
G = 16; vF6 = 128; vF4 = 168; vWP = 208; vC6 = 244; vCR = 248; vKEY = 249
vR6 = 112
vA1, vA2 = 254, 255
NPRE = 9
aK1 = 0; aK2 = 64; aV = 96; aO = 224
CSC = math.log2(math.e) / math.sqrt(20.0)
L2E = math.log2(math.e)
TSN = []
def TS(name, ctx=False):
    if not PROF: return
    i = len(TSN); TSN.append(name)
    E(f"""s_memrealtime s[94:95]
    s_memtime s[98:99]
    {f's_cmp_eq_u32 s{sF}, {WS_SM}' + chr(10) + 's_cselect_b32 s96, 0, 32' if ctx else f's_lshl_b32 s96, s{sLAY}, 5'}
    s_add_u32 s96, s96, {i}
    s_mov_b32 s97, m0
    s_mov_b32 m0, s96
    s_waitcnt lgkmcnt(0)
    v_writelane_b32 v253, s94, m0
    v_writelane_b32 v252, s98, m0
    s_mov_b32 m0, s97""")
def stop(n):
    if STOP == n: E("s_waitcnt vmcnt(0) lgkmcnt(0)\ns_branch L_dump")
def srd(d, p, size):
    E(f"s_mov_b32 s{d}, s{p}\ns_mov_b32 s{d+1}, s{p+1}\ns_mov_b32 s{d+2}, {size}\ns_mov_b32 s{d+3}, 0x20000")
ws = f"s[{WS}:{WS+3}]"
def signal(soff):
    E(f"""v_mov_b32 v5, s{sTAG}
    v_mov_b32 v6, 0
    s_mov_b64 exec, 1
    buffer_store_dword v5, v6, {ws}, s{soff} offen sc1
    s_mov_b64 exec, -1""")
def spin(body, bad_cmp):
    lp = E.label("Lsp"); ld = E.label("Lsd")
    E(f"s_mov_b32 s{sT+11}, 0x80000\n{lp}:")
    body()
    E(f"""{bad_cmp}
    s_sub_u32 s{sT+11}, s{sT+11}, 1
    s_cbranch_scc1 {ld}
    s_nop 2
    s_cbranch_vccnz {lp}
    {ld}:""")
def maxtree(regs, t):
    regs = list(regs)
    E(f"v_max3_u32 v{t}, v{regs[0]}, v{regs[1]}, v{regs[2]}")
    i = 3
    while i + 1 < len(regs):
        E(f"v_max3_u32 v{t}, v{t}, v{regs[i]}, v{regs[i+1]}"); i += 2
    if i < len(regs): E(f"v_max_u32 v{t}, v{t}, v{regs[i]}")
def maxtree2(regs, t, t2):
    h = len(regs)//2
    a_, b_ = list(regs[:h]), list(regs[h:])
    E(f"v_max3_u32 v{t}, v{a_[0]}, v{a_[1]}, v{a_[2]}\nv_max3_u32 v{t2}, v{b_[0]}, v{b_[1]}, v{b_[2]}")
    i = 3
    while i < h:
        if i + 1 < h:
            E(f"v_max3_u32 v{t}, v{t}, v{a_[i]}, v{a_[i+1]}\nv_max3_u32 v{t2}, v{t2}, v{b_[i]}, v{b_[i+1]}")
        else:
            E(f"v_max3_u32 v{t}, v{t}, v{a_[i]}, v{b_[i]}")
        i += 2
    E(f"v_max_u32 v{t}, v{t}, v{t2}")
va3 = lambda i: [vL16, vA1, vA2][i // 4]
def gather10(soff):
    def body():
        for i in range(10):
            E(f"buffer_load_dwordx4 {v(G+4*i,4)}, v{va3(i)}, {ws}, s{soff} offen offset:{(i%4)*1024} sc1")
        E("s_waitcnt vmcnt(0)")
        maxtree2(range(G, G+40), 5, 6)
    spin(body, "v_cmp_eq_u32 vcc, -1, v5")
def dual(stores):
    l1 = E.label("Lrm"); l2 = E.label("Lrd")
    E(f"s_cmp_eq_u32 s{sLOC}, 0\ns_cbranch_scc1 {l1}")
    stores("")
    E(f"s_branch {l2}\n{l1}:")
    stores("sc1")
    E(f"{l2}:")
def pubgather(stores, soff):
    dual(stores)
    gather10(soff)
def wavemax(src_, dst, rows=4):
    E(f"v_mov_b32 v10, v{src_}\ns_nop 1")
    for r in (8, 4, 2, 1):
        E(f"v_max_u32_dpp v10, v10, v10 row_ror:{r} row_mask:0xf bank_mask:0xf\ns_nop 1")
    for i in range(rows): E(f"v_readlane_b32 s{sT+4+i}, v10, {16*i}")
    if rows == 4:
        E(f"s_nop 1\ns_max_u32 s{sT+4}, s{sT+4}, s{sT+5}\ns_max_u32 s{sT+6}, s{sT+6}, s{sT+7}\ns_max_u32 s{dst}, s{sT+4}, s{sT+6}")
    else:
        E(f"s_nop 3\ns_max_u32 s{dst}, s{sT+4}, s{sT+5}")
def center(G=G, sc=56, mu=vMU):
    E(f"s_mov_b32 s{sT}, 0x00003f80\ns_mov_b32 s{sT+1}, 0x3f800000\nv_sub_f32 v7, 0, v{mu}")
    for b in range(0, 40, 8):
        for i in range(8):
            E(f"v_dot2_f32_bf16 v{sc+2*i}, v{G+b+i}, s{sT}, v7\nv_dot2_f32_bf16 v{sc+1+2*i}, v{G+b+i}, s{sT+1}, v7")
        for i in range(8):
            E(f"v_cvt_pk_bf16_f32 v{G+b+i}, v{sc+2*i}, v{sc+1+2*i}")
def halfsum(r, t):
    E(f"v_mov_b32 v{t}, v{r}\ns_nop 1\nv_permlane32_swap_b32 v{r}, v{t}\ns_nop 0\nv_add_f32 v{r}, v{r}, v{t}")
def sum8(d, x):
    E(f"""v_add_f32 v{x}, v{x}, v{x+1}
    v_add_f32 v{x+2}, v{x+2}, v{x+3}
    v_add_f32 v{x+4}, v{x+4}, v{x+5}
    v_add_f32 v{x+6}, v{x+6}, v{x+7}
    v_add_f32 v{x}, v{x}, v{x+2}
    v_add_f32 v{x+4}, v{x+4}, v{x+6}
    v_add_f32 v{d}, v{x}, v{x+4}""")
def sum4q(d, x, n):
    for i in range(0, n, 2): E(f"v_pk_add_f32 {v(x+i,2)}, {v(x+i,2)}, {v(x+n+i,2)}")
    for i in range(0, n, 2): E(f"v_pk_add_f32 {v(x+2*n+i,2)}, {v(x+2*n+i,2)}, {v(x+3*n+i,2)}")
    for i in range(0, n, 2): E(f"v_pk_add_f32 {v(d+i,2)}, {v(x+i,2)}, {v(x+2*n+i,2)}")
MF = "v_mfma_f32_32x32x16_bf16"

E(f"""; @launch grid=(256,1,1) block=(256,1,1) lds={LDS_BYTES}
.amdgcn_target "amdgcn-amd-amdhsa--gfx950"
.text
.globl {NAME}_kernel
.p2align 8
.type {NAME}_kernel,@function
{NAME}_kernel:
s_cmp_ge_u32 s2, 256
s_cbranch_scc1 L_exit2
s_load_dwordx16 s[68:83], s[0:1], 0
s_load_dwordx8 s[84:91], s[0:1], 64
s_load_dwordx2 s[92:93], s[0:1], 96
""")
if not os.environ.get("NOCPF"):
    E(f"""s_getpc_b64 s[{sT}:{sT+1}]
L_pc0:
s_lshr_b32 s{sT+2}, s2, 3
s_and_b32 s{sT+2}, s{sT+2}, 3
s_lshl_b32 s{sT+2}, s{sT+2}, 14
v_lshl_add_u32 v6, v0, 6, s{sT+2}
v_min_u32 v6, L_codeend-L_pc0-4, v6
v_mov_b32 v7, s{sT+1}
v_add_co_u32 v6, vcc, s{sT}, v6
s_nop 1
v_addc_co_u32 v7, vcc, 0, v7, vcc
global_load_dword v249, v[6:7], off""")
E(f"""v_and_b32 v{vL}, 63, v0
v_lshrrev_b32 v5, 6, v0
v_and_b32 v{vJ}, 31, v0
v_bfe_u32 v{vH}, v0, 5, 1
v_readfirstlane_b32 s{sW}, v5
v_lshlrev_b32 v{vL16}, 4, v{vL}
s_and_b32 s{sT}, s2, 7
s_lshr_b32 s{sT+1}, s2, 5
s_lshl_b32 s{sT+1}, s{sT+1}, 3
s_or_b32 s{sRB}, s{sT}, s{sT+1}
s_bfe_u32 s{sCB}, s2, 0x20003
s_mul_i32 s{sWL}, s{sW}, {PREG}
s_mov_b32 s{sLAY}, 0
s_mov_b32 s{sROLE}, 0
v_add_u32 v{vA1}, 4096, v{vL16}
v_add_u32 v{vA2}, 8192, v{vL16}
s_mov_b32 s{sT+6}, 52429
s_lshl_b32 s{sT+7}, s{sW}, 2
s_mul_i32 s{sT+5}, s{sW}, 204800
s_mul_i32 s{sT+4}, s{sCB}, 320
s_add_u32 s{sT+5}, s{sT+5}, s{sT+4}""")
vWo = 208; vXo = 213; vTa = 226; XI = RING + 2*5120
for i in range(5):
    E(f"""v_add_u32 v8, {64*i}, v{vL}
    v_mul_lo_u32 v9, v8, s{sT+6}
    v_lshrrev_b32 v10, 22, v9
    v_lshrrev_b32 v9, 20, v9
    v_mul_u32_u24 v9, 960, v9
    v_lshl_add_u32 v9, v8, 4, v9
    v_subrev_u32 v9, {1024*i if i < 4 else 0}, v9
    v_add_u32 v{vWo+i}, s{sT+5}, v9
    v_or_b32 v10, s{sT+7}, v10
    v_xor_b32 v9, v8, v10
    v_lshlrev_b32 v9, 4, v9
    v_subrev_u32 v{vXo+i}, {1024*i if i < 4 else 0}, v9""")
E(f"""s_mul_i32 s{sT}, s{sRB}, 40960
s_mul_i32 s{sT+1}, s{sW}, 10240
s_add_u32 s{sT+2}, s{sT}, s{sT+1}
s_add_u32 s{sT+3}, s{sT+2}, 5120
s_mul_i32 s{sT+1}, s{sW}, 6400
v_add_u32 v7, s{sT+1}, v{vL16}
s_mul_i32 s{sT+1}, s{sW}, 320
s_add_u32 m0, s{sWL}, {XI}
s_waitcnt lgkmcnt(0)
s_load_dword s{sTAG}, s[{pWS}:{pWS+1}], 0""")
TS("start")
VM = []
def vmw(tag):
    last = max(i for i, t in enumerate(VM) if t == tag)
    E(f"s_waitcnt vmcnt({len(VM)-1-last})")
srd(XO, pX, 2621440)
for hf in range(2):
    for i in range(4):
        E(f"buffer_load_dwordx4 v{vXo+i}, s[{XO}:{XO+3}], s{sT+2+hf} offen offset:{1024*i} lds")
    E("s_add_u32 m0, m0, 4096\ns_nop 0")
    E(f"buffer_load_dwordx4 v{vXo+4}, s[{XO}:{XO+3}], s{sT+2+hf} offen lds")
    E("s_add_u32 m0, m0, 1024" if hf == 0 else f"s_mov_b32 m0, s{sWL}")
    if hf == 0: E("s_nop 0")
VM += ["x"]*10
srd(WG, pWQ, 819200)
E(f"""s_lshr_b32 s{sT+5}, s2, 3
s_lshl_b32 s{sT+5}, s{sT+5}, 2
s_add_u32 s{sT+5}, s{sT+5}, s{sW}
s_mul_i32 s{sT+5}, s{sT+5}, 6400""")
for i in range(7):
    E(f"buffer_load_dwordx4 {a(240+4*(i%4),4)}, v{va3(i)}, s[{WG}:{WG+3}], s{sT+5} offen offset:{(i%4)*1024}")
E(f"""s_lshr_b32 s{sT+4}, s2, 3
s_cmp_lt_u32 s{sT+4}, 16
s_cselect_b32 s{T2}, s{pWK}, s{pWV}
s_cselect_b32 s{T2+1}, s{pWK+1}, s{pWV+1}
s_mov_b32 s{T2+2}, 25600
s_mov_b32 s{T2+3}, 0x20000
s_and_b32 s{sT+4}, s{sT+4}, 15
s_lshl_b32 s{sT+4}, s{sT+4}, 2
s_add_u32 s{sT+4}, s{sT+4}, s{sW}
s_mul_i32 s{sT+4}, s{sT+4}, 400
s_mov_b64 exec, 0x1ffffff
buffer_load_dwordx4 {a(252,4)}, v{vL16}, s[{T2}:{T2+3}], s{sT+4} offen
s_mov_b64 exec, -1""")
VM += ["pf"]*8
def wloads(slot, k):
    E(f"s_add_u32 m0, s{sWL}, {RING + slot*5120}\ns_mov_b32 s{sT+7}, {k*20480}")
    for i in range(4):
        E(f"buffer_load_dwordx4 v{vWo+i}, s[{WG}:{WG+3}], s{sT+7} offen offset:{1024*i} lds")
    E("s_add_u32 m0, m0, 4096\ns_nop 0")
    E(f"buffer_load_dwordx4 v{vWo+4}, s[{WG}:{WG+3}], s{sT+7} offen lds")
    VM.extend([f"W{k}"]*5)
sG, sTT, sS = sSEG, sSEG+1, sSEG+2
def xres_loads():
    E(f"""s_mul_i32 s{sT}, s{sRB}, 40960
    v_mul_u32_u24 v5, 1280, v{vJ}
    v_lshl_add_u32 v6, v{vH}, 3, v5
    v_lshl_add_u32 v5, v{vH}, 4, v5
    s_mul_i32 s{sT+4}, s{sCB}, 320
    s_mul_i32 s{sT+5}, s{sW}, 80
    s_add_u32 s{sT+4}, s{sT+4}, s{sT+5}
    s_add_u32 s{sT+4}, s{sT+4}, s{sT}
    buffer_load_dwordx4 {v(vXR,4)}, v5, s[{XO}:{XO+3}], s{sT+4} offen
    buffer_load_dwordx4 {v(vXR+4,4)}, v5, s[{XO}:{XO+3}], s{sT+4} offen offset:32
    buffer_load_dwordx2 {v(vXR+8,2)}, v6, s[{XO}:{XO+3}], s{sT+4} offen offset:64""")
def woprep_load():
    E(f"""s_lshl_b32 s{sG}, s2, 2
    s_add_u32 s{sG}, s{sG}, s{sW}
    s_min_u32 s{sT}, s{sG}, 799
    s_mul_i32 s{sT+1}, s{sT}, 52429
    s_lshr_b32 s{sT+1}, s{sT+1}, 21
    s_mul_i32 s{sT+2}, s{sT+1}, 40
    s_sub_u32 s{sS}, s{sT}, s{sT+2}
    s_mul_i32 s{sT+2}, s{sT+1}, 52429
    s_lshr_b32 s{sT+2}, s{sT+2}, 18
    s_mul_i32 s{sT+3}, s{sT+2}, 5
    s_sub_u32 s{sTT}, s{sT+1}, s{sT+3}""")
    for hh in range(2):
        E(f"""s_lshl_b32 s{sT+8}, s{sS}, 1
        s_add_u32 s{sT+8}, s{sT+8}, {hh}
        s_mul_i32 s{sT+9}, s{sT+8}, 52429
        s_lshr_b32 s{sT+9}, s{sT+9}, 18
        s_mul_i32 s{sT+10}, s{sT+9}, 5
        s_sub_u32 s{sT+8}, s{sT+8}, s{sT+10}
        s_lshl_b32 s{sT+10}, s{sT+8}, 3
        s_mov_b32 s{sEX}, 0x18140400
        s_mov_b32 s{sEX+1}, 0x10
        s_lshr_b64 s[{sEX}:{sEX+1}], s[{sEX}:{sEX+1}], s{sT+10}
        s_and_b32 s{sEX}, s{sEX}, 0xff
        s_mul_i32 s{sT+9}, s{sT+9}, 40
        s_add_u32 s{sT+4+2*hh}, s{sT+9}, s{sEX}
        s_cmp_eq_u32 s{sT+8}, 4
        s_cselect_b32 s{sT+5+2*hh}, 20, 8""")
    E(f"""v_cmp_eq_u32 vcc, 1, v{vH}
    v_mov_b32 v8, s{sT+4}
    v_mov_b32 v9, s{sT+6}
    v_cndmask_b32 v8, v8, v9, vcc
    v_mov_b32 v9, s{sT+5}
    v_mov_b32 v10, s{sT+7}
    v_cndmask_b32 v9, v9, v10, vcc
    v_bfe_u32 v10, v{vL}, 4, 1
    v_mad_u32_u24 v8, v9, v10, v8
    v_bfe_u32 v10, v{vL}, 2, 2
    v_add_u32 v8, v8, v10
    v_mul_u32_u24 v8, 1280, v8
    s_cmp_eq_u32 s{sTT}, 4
    s_cselect_b32 s{sT+4}, 80, 16
    s_mul_i32 s{sT+5}, s{sTT}, 80
    s_cselect_b32 s{sT+5}, 64, s{sT+5}
    s_mul_i32 s{sT+6}, s{sT+2}, 320
    s_add_u32 s{sT+5}, s{sT+5}, s{sT+6}
    v_and_b32 v10, 3, v{vL}
    v_mad_u32_u24 v8, v10, s{sT+4}, v8
    v_add_u32 v230, s{sT+5}, v8""")
def woprep_issue():
    srd(T2, pWO, 819200)
    E(f"s_add_u32 m0, s{sWL}, {WOPREP}\ns_nop 0\nbuffer_load_dwordx4 v230, s[{T2}:{T2+3}], 0 offen lds")

srd(WS, pWS, 0x10000000)
E(f"""s_mov_b32 s{sKV}, {WS_KV}
s_mov_b32 s{sSM}, {WS_SM}
s_mov_b32 s{sFLK}, {WS_FL}
v_mul_u32_u24 v{vVO}, 336, v{vH}
v_lshl_add_u32 v{vVO}, v{vJ}, 4, v{vVO}
v_mov_b32 v5, {OOB}
v_cmp_lt_u32 vcc, 20, v{vJ}
s_mul_i32 s{sT}, s{sW}, {OST}
v_add_u32 v{vOST}, s{sT}, v{vL16}
v_cndmask_b32 v{vVO}, v{vVO}, v5, vcc
v_bfe_u32 v5, v{vL}, 3, 2
v_and_b32 v6, 7, v{vL}
v_lshlrev_b32 v7, 11, v5
v_lshl_add_u32 v7, v{vH}, 9, v7
v_lshl_add_u32 v7, v6, 4, v7
v_add_u32 v{vQa}, {QAREA}, v7
v_lshlrev_b32 v7, 9, v5
v_lshl_add_u32 v7, v{vH}, 8, v7
v_lshl_add_u32 v7, v6, 3, v7
v_add_u32 v{vQb}, {QAREA+8192}, v7""")
E(f"""v_bfe_u32 v5, v{vL}, 2, 2
v_lshl_add_u32 v5, v{vH}, 3, v5
v_bfe_u32 v7, v{vL}, 4, 1
v_and_b32 v8, 3, v{vL}
v_lshl_add_u32 v6, v7, 2, v8
v_mul_u32_u24 v9, 320, v5
v_add_u32 v9, s{sWL}, v9
v_add_u32 v9, {RING}, v9
v_add_u32 v10, v6, v7
v_lshl_add_u32 v{vTa}, v10, 3, v9
v_lshrrev_b32 v10, 1, v6
v_mul_u32_u24 v10, 80, v10
v_and_b32 v8, 1, v6
v_mad_u32_u24 v10, v8, 40, v10
v_add3_u32 v{vTa+1}, v10, v9, 32
v_mul_u32_u24 v9, 40, v5
v_min_u32 v10, 4, v6
v_lshlrev_b32 v10, 3, v10
v_mov_b32 v8, {CONST}
v_cmp_lt_u32 vcc, 5, v6
v_add_u32 v9, s{sWL}, v9
v_mul_u32_u24 v7, 40, v{vL}
v_cndmask_b32 v10, v10, v8, vcc
v_add_u32 v{vTa+2}, v9, v10
s_add_u32 s{sT}, s{sWL}, {CONST}
v_add_u32 v7, s{sT}, v7
s_add_u32 s{sT}, s{sWL}, {CSO}
v_lshl_add_u32 v{vTa+3}, v{vJ}, 2, s{sT}
s_getreg_b32 s{sT+1}, hwreg(HW_REG_XCC_ID, 0, 4)
s_lshl_b32 s{sT+2}, s{sRB}, 2
s_add_u32 s{sT+2}, s{sT+2}, s{sCB}
s_lshl_b32 s{sT+2}, s{sT+2}, 6
s_add_u32 s{sT+2}, s{sT+2}, {WS_FL+0x10000}
v_mov_b32 v8, 0x3f80
v_mov_b32 v101, 0
v_mov_b32 v103, 0
v_mov_b32 v105, 0
s_mul_i32 s{sT+3}, s{sW}, 20
v_lshrrev_b32 v5, 3, v{vJ}
v_mul_u32_u24 v6, {PREG}, v5
v_and_b32 v9, 7, v{vJ}
v_mul_u32_u24 v9, 1280, v9
v_add3_u32 v6, v6, v9, s{sT+3}
v_and_b32 v9, 3, v{vJ}
v_lshl_or_b32 v5, v5, 2, v9
v_subrev_u32 v6, s{sT+3}, v6
v_add_u32 v6, {XI}, v6
v_add_u32 v9, s{sT+3}, v{vH}""")
for k in range(10):
    E(f"v_add_u32 v10, {2*k}, v9\nv_xor_b32 v10, v10, v5\nv_lshl_add_u32 v{56+k}, v10, 4, v6")
E(f"""s_waitcnt lgkmcnt(0)
s_add_u32 s{sTAG}, s{sTAG}, 1
s_lshl_b32 s{sT}, s{sTAG}, 4
s_or_b32 s{sLOC}, s{sT}, s{sT+1}
v_mov_b32 v5, s{sLOC}
v_mov_b32 v6, 0
s_mov_b64 exec, 1
buffer_store_dword v5, v6, {ws}, s{sT+2} offen sc1
s_mov_b64 exec, -1
v_mov_b32 v66, v7
v_mov_b32 v67, v8""")
VM.append("cl")
woprep_load()
E(f"v_subrev_u32 v5, s{sWL}, v{vTa}\ns_mul_i32 s{sT}, s{sW}, 80\nv_add_u32 v5, s{sT}, v5")
for g in range(4):
    E(f"""s_add_u32 s{sT}, s{sW}, {g}
    s_and_b32 s{sT}, s{sT}, 3
    s_mul_i32 s{sT}, s{sT}, {PREG}
    v_add_u32 v{218+g}, s{sT}, v5
    v_add_u32 v{222+g}, s{sT}, v{vL16}""")
if os.environ.get("KTS"): TS("calc_done")
l6a = E.label("L6a")
E(f"s_mul_i32 s{sT+1}, s{sW}, 6400\nv_add_u32 v7, s{sT+1}, v{vL16}\ns_mov_b32 m0, s{sWL}")
E(f"""s_cmp_ge_u32 s{sCB}, 2
s_cbranch_scc1 {l6a}
s_cmp_eq_u32 s{sCB}, 0
s_cselect_b32 s{T2}, s{pWK}, s{pWV}
s_cselect_b32 s{T2+1}, s{pWK+1}, s{pWV+1}
s_mov_b32 s{T2+2}, 25600
s_mov_b32 s{T2+3}, 0x20000
s_mov_b32 s{sT+4}, 4096""")
for i in range(4):
    E(f"buffer_load_dwordx4 v7, s[{T2}:{T2+3}], 0 offen offset:{i*1024} lds")
E("s_add_u32 m0, m0, 4096\ns_nop 0")
for i in range(2):
    E(f"buffer_load_dwordx4 v7, s[{T2}:{T2+3}], s{sT+4} offen offset:{i*1024} lds")
E(f"""s_mov_b64 exec, 0xffff
buffer_load_dwordx4 v7, s[{T2}:{T2+3}], s{sT+4} offen offset:2048 lds
s_mov_b64 exec, -1
{l6a}:""")
srd(T2, pWR, 1280)
E(f"v_lshlrev_b32 v7, 1, v{vL}\ns_mul_i32 s{sT+1}, s{sW}, 320")
for i in range(3):
    E(f"buffer_load_ushort v{100+2*i}, v7, s[{T2}:{T2+3}], s{sT+1} offen offset:{128*i}")
VM += ["wr"]*3
if os.environ.get("KTS"): TS("wr_issued")
vmw("x")
E("s_barrier")
TS("x_arrived")
for k in range(10): E(f"ds_read_b128 {v(G+4*k,4)}, v{56+k}")
wloads(0, 0)
vmw("wr")
E(f"""v_lshl_or_b32 v100, v100, 16, v67
v_lshl_or_b32 v102, v102, 16, v67
v_lshl_or_b32 v104, v104, 16, v67
ds_write_b64 v66, v[100:101]
ds_write_b64 v66, v[102:103] offset:2560
s_mov_b64 exec, 0xffffffff
ds_write_b64 v66, v[104:105] offset:5120
s_mov_b64 exec, -1
s_waitcnt lgkmcnt(0)""")
for k in range(10):
    for u in range(2):
        E(f"ds_read_b64_tr_b16 {v(vF6+4*k+2*u,2)}, v{vTa+2} offset:{k*640+u*160}")
E(f"""s_mov_b32 s{sT}, 0x3f803f80
v_mov_b32 v5, 0
v_mov_b32 v6, 0
s_waitcnt lgkmcnt(0)""")
for i in range(40):
    E(f"v_dot2_f32_bf16 v{5+i%2}, v{vF6+i}, s{sT}, v{5+i%2}")
wloads(1, 1)
if os.environ.get("KTS"): TS("c6")
E("s_nop 2\nv_add_f32 v5, v5, v6")
halfsum(5, 6)
E(f"ds_write_b32 v{vTa+3}, v5")
def lnkv(p1, after_bar=None, before_bar=None):
    A6 = 64
    E("v_mov_b32 v6, 0\nv_mov_b32 v7, 0")
    for k in range(10):
        E(f"{MF} {v(A6,16)}, {v(vF6+4*k,4)}, {v(G+4*k,4)}, {'0' if k == 0 else v(A6,16)}")
        for i in range(4*k, 4*k+4):
            E(f"v_dot2_f32_bf16 v{6+i%2}, v{G+i}, v{G+i}, v{6+i%2}")
    E(f"""s_lshl_b32 s{sT}, s{sW}, 4
    s_add_u32 s{sT}, s{sT}, {STAT1}
    v_lshlrev_b32 v8, 6, v{vJ}
    v_add_f32 v7, v6, v7
    v_add_u32 v9, s{sT}, v8
    v_add_u32 v8, {STAT1}, v8
    v_mov_b32 v6, v7
    s_mul_i32 s{sT}, s{sW}, 3072
    s_add_u32 s{sT}, s{sT}, {P6}
    v_permlane32_swap_b32 v6, v7
    v_add_u32 v10, s{sT}, v{vL16}
    s_min_u32 s{sT}, s{sW}, 2
    s_lshl_b32 s{sT+1}, s{sT}, 10
    s_add_u32 s{sT+1}, s{sT+1}, {P6}
    v_add_f32 v{A6+14}, v6, v7""")
    for q in range(3): E(f"ds_write_b128 v10, {v(A6+4*q,4)} offset:{q*1024}")
    E(f"""s_mov_b64 exec, 0xffffffff
    ds_write_b128 v9, {v(A6+12,4)}
    s_mov_b64 exec, -1
    v_add_u32 v9, s{sT+1}, v{vL16}""")
    if before_bar: before_bar()
    E("s_waitcnt lgkmcnt(0)\ns_barrier")
    for i in range(4): E(f"ds_read_b128 {v(80+4*i,4)}, v8 offset:{16*i}")
    for wr in range(4): E(f"ds_read_b128 {v(64+4*wr,4)}, v9 offset:{wr*3072}")
    if after_bar: after_bar()
    if p1: E(f"""s_min_u32 s{sT}, s{sW}, 2
    s_lshl_b32 s{sT}, s{sT}, 5
    s_add_u32 s{sT}, s{sT}, {CSO}
    v_lshl_add_u32 v5, v{vH}, 4, s{sT}
    v_add_u32 v6, {2*PREG}, v5
    v_mov_b32 v7, {CSO+100}
    v_mov_b32 v10, {CSO+100+2*PREG}""")
    if p1:
        for wr in range(4): E(f"ds_read_b128 {v(100+4*wr,4)}, v{5+wr//2} offset:{(wr%2)*PREG}")
        for wr in range(4): E(f"ds_read_b32 v{56+wr}, v{7 if wr < 2 else 10} offset:{(wr%2)*PREG}")
    E(f"s_waitcnt lgkmcnt({12 if p1 else 4})")
    sum4q(80, 80, 4)
    E(f"""v_mul_f32 v{vMU}, {f2u(1.0/640)}, v80
    v_mul_f32 v5, {f2u(1.0/640)}, v82
    v_fma_f32 v5, -v{vMU}, v{vMU}, v5
    v_max_f32 v5, 0, v5
    v_add_f32 v6, {f2u(1e-5)}, v5
    v_rsq_f32 v{vRS}, v6
    s_waitcnt lgkmcnt(0)""")
    if p1: sum4q(vC6, 100, 4)
    sum4q(vR6, 64, 4)
    if p1:
        E(f"v_add_f32 v56, v56, v57\nv_add_f32 v58, v58, v59\nv_add_f32 v{vCR}, v56, v58\nv_mov_b32 v{vAL}, v{vRS}")
        for i in range(4): E(f"v_fma_f32 v{vR6+i}, -v{vMU}, v{vC6+i}, v{vR6+i}")
        return
    E(f"""v_add_f32 v6, 1.0, v{vRS}
    v_mul_f32 v7, v6, v6
    v_mov_b32 v8, {f2u(1e-5)}
    v_fmac_f32 v8, v5, v7
    v_rsq_f32 v8, v8""")
    for i in range(4): E(f"v_fma_f32 v{vR6+i}, -v{vMU}, v{vC6+i}, v{vR6+i}")
    E(f"""v_mul_f32 v{vAL}, v6, v8
""")

def kvpost(before_bar=None):
    lk1 = E.label("Lk"); lkv = E.label("Lkv"); lk2 = E.label("Lk"); lk3 = E.label("Lk"); lk4 = E.label("Lk")
    for i in range(4): E(f"v_mul_f32 v{56+i}, v{vR6+i}, v{vAL}")
    E(f"""s_cmp_ge_u32 s{sCB}, 2
    s_cbranch_scc1 {lk1}
    s_cmp_eq_u32 s{sW}, 3
    s_cbranch_scc1 {lk1}
    s_lshl_b32 s{sT}, s{sW}, 9
    s_add_u32 s{sT}, s{sT}, {VT}
    s_cmp_eq_u32 s{sCB}, 1
    s_cbranch_scc1 {lkv}
    v_cvt_pk_bf16_f32 v60, v56, v57
    v_cvt_pk_bf16_f32 v61, v58, v59
    v_lshl_add_u32 v5, v{vL}, 3, s{sT}
    ds_write_b64 v5, v[60:61]
    s_branch {lk1}
    {lkv}:
    s_cmp_lg_u32 s{sW}, 2
    s_cbranch_scc1 {lk2}
    v_cmp_eq_u32 vcc, 1, v{vH}
    s_nop 1
    v_cndmask_b32 v56, v56, 1.0, vcc
    {lk2}:
    v_cvt_pk_bf16_f32 v60, v56, v57
    v_cvt_pk_bf16_f32 v61, v58, v59
    v_and_b32 v5, 0x13, v{vJ}
    v_bfe_u32 v6, v{vJ}, 2, 1
    v_lshl_add_u32 v5, v6, 3, v5
    v_bfe_u32 v6, v{vJ}, 3, 1
    v_lshl_add_u32 v5, v6, 2, v5
    v_lshlrev_b32 v5, 1, v5
    v_lshl_add_u32 v5, v{vH}, 8, v5
    v_add_u32 v5, s{sT}, v5
    ds_write_b16 v5, v60
    ds_write_b16_d16_hi v5, v60 offset:64
    ds_write_b16 v5, v61 offset:128
    ds_write_b16_d16_hi v5, v61 offset:192
    {lk1}:""")
    if before_bar: before_bar()
    E(f"""s_waitcnt lgkmcnt(0)
    s_barrier
    s_cmp_ge_u32 s{sCB}, 2
    s_cbranch_scc1 {lk3}
    s_cmp_lg_u32 s{sW}, 0
    s_cbranch_scc1 {lk3}
    s_cmp_eq_u32 s{sCB}, 1
    s_cbranch_scc1 {lk4}
    v_lshlrev_b32 v5, 3, v{vL}
    v_add_u32 v5, {VT}, v5
    ds_read_b64 v[56:57], v5
    ds_read_b64 v[58:59], v5 offset:512
    ds_read_b64 v[60:61], v5 offset:1024
    s_lshl_b32 s{sT}, s{sRB}, 10
    s_add_u32 s{sT}, s{sT}, s{sKV}
    s_lshr_b32 s{sT+1}, s{sRB}, 1
    s_lshl_b32 s{sT+1}, s{sT+1}, 10
    s_and_b32 s{sT+2}, s{sRB}, 1
    s_lshl_b32 s{sT+2}, s{sT+2}, 3
    s_add_u32 s{sT+1}, s{sT+1}, s{sT+2}
    s_add_u32 s{sT+1}, s{sT+1}, s{sKV}
    s_add_u32 s{sT+1}, s{sT+1}, {K2OFF}
    s_waitcnt lgkmcnt(0)
    buffer_store_dwordx4 v[56:59], v{vL16}, {ws}, s{sT} offen sc1
    buffer_store_dwordx2 v[60:61], v{vL16}, {ws}, s{sT+1} offen sc1
    s_branch {lk3}
    {lk4}:
    v_min_u32 v5, 23, v{vJ}
    v_lshlrev_b32 v5, 6, v5
    v_lshl_add_u32 v5, v{vH}, 4, v5
    v_add_u32 v5, {VT}, v5
    ds_read_b128 v[56:59], v5
    ds_read_b128 v[60:63], v5 offset:32
    s_mul_i32 s{sT}, s{sRB}, 1344
    s_add_u32 s{sT}, s{sT}, s{sKV}
    s_add_u32 s{sT}, s{sT}, {VOFF}
    s_waitcnt lgkmcnt(0)
    buffer_store_dwordx4 v[56:59], v{vVO}, {ws}, s{sT} offen sc1
    buffer_store_dwordx4 v[60:63], v{vVO}, {ws}, s{sT} offen offset:672 sc1
    {lk3}:""")

def kvflag(n, sT=sT):
    l = E.label("Lkf")
    E(f"""s_cmp_lg_u32 s{sW}, 0
    s_cbranch_scc1 {l}
    s_lshl_b32 s{sT}, s2, 6
    s_add_u32 s{sT}, s{sT}, s{sFLK}
    s_waitcnt vmcnt({n})""")
    signal(sT)
    E(f"{l}:")
def drain(i):
    for g in range(4):
        for u in range(2):
            E(f"ds_read_b64_tr_b16 {a(4*(10*g+i)+2*u,2)}, v{218+g} offset:{(i%4)*5120 + u*1280}")
    for u in range(2):
        E(f"ds_read_b64_tr_b16 {v(vF4+4*i+2*u,2)}, v{vTa+1} offset:{(i%4)*5120 + u*1280}")
lnkv(True, lambda: wloads(2, 2))
TS("lnkv_done")
kvpost(lambda: vmw("W0"))
NKV = len(VM)
TS("kv_stored")
drain(0)
wloads(3, 3)
woprep_issue(); VM.append("wop")
center()
for k in range(10): E(f"ds_write_b128 v222, {v(G+4*k,4)} offset:{k*1024}")
AM = v(96, 16); A4 = a(240, 16)
def breads(i):
    for g in range(1, 4):
        E(f"ds_read_b128 {v(56+12*(i%3)+4*(g-1),4)}, v{222+g} offset:{i*1024}")
def p1m(i):
    b = 56 + 12*(i % 3)
    E(f"{MF} {A4}, {v(vF4+4*i,4)}, {v(G+4*i,4)}, {'0' if i == 0 else A4}")
    for g in range(4):
        E(f"{MF} {AM}, {a(4*(10*g+i),4)}, {v(G+4*i,4) if g == 0 else v(b+4*(g-1),4)}, {'0' if i == 0 and g == 0 else AM}")
def cap(f, *a_):
    n0 = len(E.L); f(*a_); out = [x.strip() for x in E.L[n0:]]; del E.L[n0:]; return out
for i in range(1, 10):
    vmw(f"W{i}")
    E("s_waitcnt lgkmcnt(0)\ns_barrier")
    if os.environ.get("KTS"): TS(f"k{i}")
    wl = cap(wloads, (i-1) % 4, i+3) if i <= 6 else []
    rd_ = cap(drain, i) + (cap(breads, 0) if i == 1 else []) + cap(breads, i)
    ms = cap(p1m, i-2) if i >= 2 else []
    grp = [wl[0:3], wl[3:4], wl[4:5], wl[5:6], wl[6:]] if wl else [[]]*5
    per = -(-len(rd_)//5)
    for m_ in range(5):
        if ms: E(ms[m_])
        for x in rd_[m_*per:(m_+1)*per] + grp[m_]: E(x)
    if i == 1: kvflag(len(VM) - NKV)
    if i == 7: xres_loads(); VM += ["xr"]*3
p1m(8)
E(f"""v_mov_b32 v{vPI}, v{vJ}
v_mov_b32 v240, 0
v_mov_b32 v241, 0
v_and_b32 v{vOT}, 7, v{vL}
s_lshl_b32 s{sT+8}, s{sW}, 3
v_add_u32 v{vOT}, s{sT+8}, v{vOT}
s_mul_i32 s{sT+8}, s{sCB}, 204800
s_mul_i32 s{sT+9}, s{sW}, 40960
s_add_u32 s{sT+8}, s{sT+8}, s{sT+9}
s_lshl_b32 s{sT+9}, s{sRB}, 10
s_add_u32 s{sT+8}, s{sT+8}, s{sT+9}
s_add_u32 s{sT+8}, s{sT+8}, {WS_WQF}
s_lshl_b32 s{sT}, s{sW}, 10
s_add_u32 s{sT}, s{sT}, {RING}
v_add_u32 v6, s{sT}, v{vL16}
v_add_u32 v7, {2*PREG}, v6
s_waitcnt lgkmcnt(0)""")
p1m(9)
E(f"s_cmp_lt_u32 s{sRB}, 10\ns_cbranch_scc1 L_wqf\nL_wqf_ret:\ns_nop 5")
if os.environ.get("KTS"): TS("mfma_done")
for q in range(4): E(f"ds_write_b128 v222, {a(240+4*q,4)} offset:{RING+q*1024}")
E("s_waitcnt lgkmcnt(0)\ns_barrier")
for wr in range(4): E(f"ds_read_b128 {v(56+4*wr,4)}, v{6+wr//2} offset:{(wr%2)*PREG}")
E("s_waitcnt lgkmcnt(0)")
sum4q(112, 56, 4)
E("L_qpost:")
E(f"v_mul_f32 v6, {f2u(CSC)}, v{vAL}")
for i in range(0, 20, 2): E(f"v_pk_mul_f32 {v(96+i,2)}, {v(96+i,2)}, v[6:7] op_sel_hi:[1,0]")
for i in range(10): E(f"v_cvt_pk_bf16_f32 v{56+i}, v{96+2*i}, v{97+2*i}")
E(f"""s_lshl_b32 s{sT}, s{sW}, 11
s_add_u32 s{sT}, s{sT}, {QAREA}
s_lshl_b32 s{sT+1}, s{sW}, 9
s_add_u32 s{sT+1}, s{sT+1}, {QAREA+8192}
v_lshl_add_u32 v7, v{vH}, 5, v{vPI}
v_lshl_add_u32 v5, v7, 4, s{sT}
v_lshl_add_u32 v6, v7, 3, s{sT+1}
ds_write_b128 v5, v[56:59]
ds_write_b128 v5, v[60:63] offset:1024
ds_write_b64 v6, v[64:65]
s_lshl_b32 s{sT}, s{sW}, 14
s_add_u32 s{sKVO}, s{sT}, s{sKV}
s_lshl_b32 s{sT}, s{sW}, 13
s_add_u32 s{sT}, s{sT}, s{sKV}
s_add_u32 s{sKVO+4}, s{sT}, {K2OFF}
s_mul_i32 s{sT}, s{sW}, {16*1344}
s_add_u32 s{sT}, s{sT}, s{sKV}
s_add_u32 s{sKVO+6}, s{sT}, {VOFF}""")
for i in range(1, 4): E(f"s_add_u32 s{sKVO+i}, s{sKVO}, {4096*i}")
E(f"s_add_u32 s{sKVO+5}, s{sKVO+4}, 4096")
for i in range(1, 6): E(f"s_add_u32 s{sKVO+6+i}, s{sKVO+6}, {3*1344*i}")
def segoffs(base_imm, cbmul):
    E(f"""s_mul_i32 s{sT}, s{sCB}, {cbmul}
    s_mul_i32 s{sT+1}, s{sW}, 40960
    s_add_u32 s{sT}, s{sT}, {base_imm}
    s_add_u32 s{sT+1}, s{sT+1}, s{sT}""")
    for g in range(4):
        E(f"""s_add_u32 s{sT+2}, s{sW}, {g}
        s_and_b32 s{sT+2}, s{sT+2}, 3
        s_mul_i32 s{sT+2}, s{sT+2}, 10240
        s_add_u32 s{sSEG+g}, s{sT+2}, s{sT+1}""")
    E(f"s_mul_i32 s{sT+2}, s{sW}, 10240\ns_add_u32 s{sT}, s{sT}, 163840\ns_add_u32 s{sSEG+4}, s{sT}, s{sT+2}")
TS("q_done")
E(f"""s_lshl_b32 s{sT+2}, s{sRB}, 8
s_add_u32 s{sT+2}, s{sT+2}, {WS_FL+0x10000}
v_and_b32 v6, 3, v{vL}
v_lshlrev_b32 v6, 6, v6
buffer_load_dword v13, v6, {ws}, s{sT+2} offen sc1
s_branch L_idle
L_idle_ret:""")
lw = E.label("Lkw")
E(f"s_cmp_lg_u32 s{sW}, 0\ns_cbranch_scc1 {lw}")
def flagloads(base):
    E(f"v_lshlrev_b32 v5, 6, v{vL}")
    for i in range(4): E(f"s_add_u32 s{sT+i}, s{sFLK}, {base+i*4096}")
    for i in range(4): E(f"buffer_load_dword v{8+i}, v5, {ws}, s{sT+i} offen sc1")
def flagcheck(n=0):
    E(f"s_waitcnt vmcnt({n})")
    for i in range(4): E(f"v_xor_b32 v{8+i}, s{sTAG}, v{8+i}")
    E("v_or_b32 v8, v8, v9\nv_or3_b32 v8, v8, v10, v11")
def body():
    flagloads(0); flagcheck()
spin(body, "v_cmp_ne_u32 vcc, 0, v8")
E(f"{lw}:\ns_waitcnt lgkmcnt(0)\ns_barrier")
TS("kv_ready")
stop(1)
def kvloads(t):
    L = []
    if t % 2 == 0:
        p = t // 2
        L.append(f"buffer_load_dwordx4 {a(aK2+4*p,4)}, v{vL16}, {ws}, s{sKVO+4+p//4} offen offset:{(p%4)*1024} sc1")
    L.append(f"buffer_load_dwordx4 {a(aK1+4*t,4)}, v{vL16}, {ws}, s{sKVO+t//4} offen offset:{(t%4)*1024} sc1")
    for m in range(2):
        L.append(f"buffer_load_dwordx4 {a(aV+8*t+4*m,4)}, v{vVO}, {ws}, s{sKVO+6+t//3} offen offset:{(t%3)*1344+m*672} sc1")
    return L
def qreads(r):
    q = vQ + 10*(r % 2)
    return [f"ds_read_b128 {v(q,4)}, v{vQa} offset:{r*128}", f"ds_read_b128 {v(q+4,4)}, v{vQa} offset:{r*128+1024}",
            f"ds_read_b64 {v(q+8,2)}, v{vQb} offset:{r*64}"]
def qk(T):
    r, t = T // 16, T % 16
    S = vS + 32*(T % 2); q = vQ + 10*(r % 2)
    return [f"{MF} {v(S,16)}, {a(aK1+4*t,4)}, {v(q,4)}, 0",
            f"{MF} {v(S+16,16)}, {a(aK1+4*t,4)}, {v(q+4,4)}, 0",
            f"v_mfma_f32_32x32x4_2b_bf16 {v(S,32)}, {a(aK2+2*t,2)}, {v(q+8,2)}, {v(S,32)}"]
def pv(T, q):
    t = T % 16; P = vP + 8*q; O = a(aO+16*q, 16)
    return [f"{MF} {O}, {a(aV+8*t,4)}, {v(P,4)}, {'0' if t == 0 else O}", f"{MF} {O}, {a(aV+8*t+4,4)}, {v(P+4,4)}, {O}"]
def sm(T, q):
    S = vS + 32*(T % 2) + 16*q; P = vP + 8*q; va = []
    for k in range(8):
        va += [f"v_exp_f32 v{S+2*k}, v{S+2*k}", f"v_exp_f32 v{S+2*k+1}, v{S+2*k+1}"]
        if k > 0: va.append(f"v_cvt_pk_bf16_f32 v{P+k-1}, v{S+2*k-2}, v{S+2*k-1}")
    va.append(f"v_cvt_pk_bf16_f32 v{P+7}, v{S+14}, v{S+15}")
    return va
def owrite(qt):
    return [f"ds_write_b128 v{vOST}, {a(aO+16*(qt%2)+4*g,4)} offset:{qt*3072+g*1024}" for g in range(3)]
nld = lambda u: 4 if u % 2 == 0 else 3
PD = 6
WOq = []
rel = {}
for t in range(16):
    fr = [aK1+4*t] + ([aK2+4*(t//2)] if t % 2 else []) + ([aV+8*(t-1), aV+8*(t-1)+4] if t > 0 else [])
    rel[t] = fr; WOq += fr
def wfrag_load(dst, j, base=sSEG):
    seg, i = (4, j) if j < 10 else ((j-10)//10, (j-10) % 10)
    return f"buffer_load_dwordx4 {dst}, v{va3(i)}, {ws}, s{base+seg} offen offset:{(i%4)*1024} sc1"
def qseg():
    for g in range(4): E(f"s_sub_u32 s{sT+g}, s{sSEG+g}, {WS_WOF-WS_WQF}")
E.c("attention over this wave's 512 keys; exp uses the constant stand-in 0 for the row max, checked after the loop")
def rcloads():
    E(f"""buffer_load_dwordx4 v[208:211], v{vL16}, {ws}, s{sF} offen sc1
    buffer_load_dwordx4 v[212:215], v{vL16}, {ws}, s{sF} offen offset:1024 sc1""")
lrc = E.label("Lrc")
E(f"s_cmp_eq_u32 s{sLAY}, 0\ns_cbranch_scc1 {lrc}")
rcloads()
E(f"{lrc}:")
AV = []
def aload(t):
    L = kvloads(t); AV.extend([t]*len(L)); return L
def await_(t):
    last = max(i for i, x in enumerate(AV) if x == t)
    return f"s_waitcnt vmcnt({len(AV)-1-last})"
for t in range(2):
    for x in aload(t): E(x)
for x in qreads(0): E(x)
E(f"""v_mov_b32 v8, -1
v_mov_b32 v9, -1
v_mov_b32 v10, -1
v_mov_b32 v11, -1
s_cmp_eq_u32 s{sLAY}, 0
s_cbranch_scc1 L_loc
L_loc_ret:
s_mul_i32 s{sT}, s{sRB}, 40960
s_mul_i32 s{sT+1}, s{sW}, 10240
s_add_u32 s{sT}, s{sT}, s{sT+1}
s_and_b32 s{sT+1}, s{sCB}, 1
s_mul_i32 s{sT+1}, s{sT+1}, 5120
s_add_u32 s{sT}, s{sT}, s{sT+1}
s_lshr_b32 s{sT+1}, s{sCB}, 1
s_mul_i32 s{sT+1}, s{sT+1}, {WS_VB-WS_OB}
s_add_u32 s{sT}, s{sT}, s{sT+1}
s_add_u32 s{sT}, s{sT}, {WS_OB}""")
for x in aload(2): E(x)
E.c("poison this cluster's hand-off buffers with the not-yet-written marker (plain stores only if the whole cluster shares one L2)")
def pst(f):
    for i in range(5):
        E(f"buffer_store_dwordx4 v[8:11], v{va3(i)}, {ws}, s{sT} offen offset:{(i%4)*1024} {f}")
dual(pst); AV.extend(["p"]*5)
E(f"s_waitcnt lgkmcnt(0)\n{await_(0)}")
x = qk(0)
E(x[0] + "\n" + x[1] + "\ns_nop 7\ns_nop 1\n" + x[2] + "\ns_nop 15\ns_nop 3")
jw = 0
for T in range(64):
    if T in (16, 32, 48): TS(f"att{T}")
    n = qk(T+1) if T < 63 else [None]*3
    po = pv(T-1, 1) if T > 0 else [None]*2
    pe = pv(T, 0)
    ve, vo = sm(T, 0), sm(T, 1)
    pre = []; mid1 = []; mid2 = []; post = []
    if T + 1 < 16: pre.append(await_(T+1))
    sched = {0: (3, 4), 1: (5, 6), 2: (7, 8)}
    for u in sched.get(T, (T+6,) if T+6 < 16 else ()):
        (mid1 if u in (3, 5, 7) or T > 2 else mid2).extend(aload(u))
    if T % 16 == 0 and T > 0:
        mid1 += owrite(2*(T//16) - 2); post += owrite(2*(T//16) - 1)
    if T in (8, 24, 45): mid1 += qreads(T//16 + 1)
    if T % 16 == 15 and T < 48: pre.append("s_waitcnt lgkmcnt(0)")
    if T >= 48:
        for r_ in rel[T-48]:
            if jw < 50: mid2.append(wfrag_load(a(r_, 4), jw)); jw += 1
    for x in pre: E(x)
    seq = [(n[0], ve[0:6]), (po[0], ve[6:12]), (n[1], ve[12:18]), (po[1], ve[18:24]), (n[2], vo[0:10]), (pe[0], vo[10:17]), (pe[1], vo[17:24])]
    for i, (m, vs) in enumerate(seq):
        if m: E(m)
        for x in vs: E(x)
        if i == 1:
            for x in mid1: E(x)
        if i == 4:
            for x in mid2: E(x)
    for x in post: E(x)
    def rolehook(bit, name):
        E(f"s_bitcmp1_b32 s{sROLE}, {bit}\ns_cbranch_scc1 L_{name}\nL_{name}_ret:")
    if T == 1: E(f"s_cmp_lg_u32 s{sLAY}, 0\ns_cbranch_scc1 L_top2\nL_top2_ret:")
    if T == 5: rolehook(0, "u2")
    if T == 11: rolehook(1, "dh")
    if T == 14: rolehook(1, "d2")
    if T == 20: rolehook(4, "h1")
    if T == 23: rolehook(4, "h2")
    if T == 26: rolehook(4, "h3")
    if T == 34: rolehook(2, "s1")
    if T == 38: rolehook(2, "s2")
    if T == 58: rolehook(3, "lt1")
    if T == 16: E(f"s_cmp_eq_u32 s{sLAY}, 0\ns_cbranch_scc1 L_hook10\nL_hook10_ret:")
    if T == 21: E(f"s_waitcnt vmcnt(1)\ns_barrier\ns_cmp_eq_u32 s{sW}, 0\ns_cbranch_scc1 L_hook28\nL_hookret28:")
    if T >= 2 and (T-2) % 4 == 0 and (T-2)//4 < 10:
        sl = (T-2)//4
        if sl == 5: E(f"s_mov_b32 s{sDS}, s{sD5}")
        if sl == 7: E(f"s_add_u32 s{sDS}, s{sDS}, s{sD5+1}")
        sr = WG if sl < 5 else T2
        AV.append("d")
        E(f"buffer_load_dwordx4 v12, s[{sr}:{sr+3}], s{sDS} offen lds\ns_add_u32 m0, m0, 1024\ns_add_u32 s{sDS}, s{sDS}, s{sDT}")
    if T == 27: flagloads(0x8000)
    if T == 33:
        flagcheck(1)
        E(f"""v_cmp_ne_u32 vcc, 0, v8
        s_cmp_eq_u32 s{sLAY}, 0
        s_cselect_b64 s[{sEX}:{sEX+1}], -1, 0
        s_nop 1
        s_or_b64 vcc, vcc, s[{sEX}:{sEX+1}]
        s_cbranch_vccnz L_hook47
        L_hookret47:""")
TS("att64")
for x in pv(63, 1): E(x)
E("s_nop 7\ns_nop 1")
for x in owrite(6): E(x)
E(f"""s_mul_i32 s{sT}, s{sW}, 6144
v_add_u32 v6, s{sT}, v{vL16}
v_add_u32 v7, {2*OST}, v6""")
for x in owrite(7): E(x)
E(f"s_bitcmp1_b32 s{sROLE}, 3\ns_cbranch_scc1 L_lt2\nL_lt2_ret:")
E("s_waitcnt lgkmcnt(0)\ns_barrier\nL_ored:")
for wr in range(4):
    for qi in range(6):
        E(f"ds_read_b128 {v(16+(wr*6+qi)*4,4)}, v{6 if wr < 2 else 7} offset:{(wr%2)*OST + qi*1024}")
E(f"""s_mul_i32 s{sT+10}, s{sRB}, 40960
s_mul_i32 s{sT+1}, s{sCB}, 10240
s_add_u32 s{sT+9}, s{sT+10}, s{sT+1}
s_add_u32 s{sT+1}, s{sT+9}, {WS_OB}
s_mul_i32 s{sT+2}, s{sW}, 10240
s_add_u32 s{sT+10}, s{sT+10}, s{sT+2}
v_bfe_u32 v5, v{vL}, 3, 2
v_mul_u32_u24 v5, 2560, v5
v_lshl_add_u32 v5, v{vOT}, 4, v5
v_lshl_add_u32 v9, v{vH}, 9, v5
v_lshl_add_u32 v10, v{vH}, 30, v5
s_waitcnt lgkmcnt(0)
s_barrier""")
sum4q(16, 16, 24)
lla = E.label("Lla")
E(f"s_bitcmp0_b32 s{sROLE}, 3\ns_cbranch_scc1 {lla}")
for i in range(0, 12, 2): E(f"v_pk_add_f32 {v(16+i,2)}, {v(16+i,2)}, {v(208+i,2)}")
for i in range(0, 12, 2): E(f"v_pk_add_f32 {v(28+i,2)}, {v(28+i,2)}, {v(224+i,2)}")
E(f"{lla}:")
E(f"""v_mov_b32 v5, v24
v_mov_b32 v6, v24
v_mov_b32 v7, v36
v_mov_b32 v8, v36
s_nop 1
v_permlane32_swap_b32 v5, v6
v_permlane32_swap_b32 v7, v8
s_nop 1
v_rcp_f32 v6, v6
v_rcp_f32 v8, v8
s_nop 0""")
for i in range(12): E(f"v_mul_f32 v{16+i}, v{16+i}, v6")
for i in range(12): E(f"v_mul_f32 v{28+i}, v{28+i}, v8")
for i in range(4): E(f"v_cvt_pk_bf16_f32 v{56+i}, v{16+2*i}, v{17+2*i}")
for i in range(4): E(f"v_cvt_pk_bf16_f32 v{60+i}, v{28+2*i}, v{29+2*i}")
for i in range(2): E(f"v_cvt_pk_bf16_f32 v{64+i}, v{24+2*i}, v{25+2*i}")
for i in range(2): E(f"v_cvt_pk_bf16_f32 v{66+i}, v{36+2*i}, v{37+2*i}")
def ost(f):
    E(f"""buffer_store_dwordx4 v[56:59], v9, {ws}, s{sT+1} offen {f}
    buffer_store_dwordx4 v[60:63], v9, {ws}, s{sT+1} offen offset:1024 {f}
    buffer_store_dwordx4 v[64:67], v10, {ws}, s{sT+1} offen offset:2048 {f}""")
E(f"s_add_u32 s{sT}, s{sT+10}, {WS_OB}")
TS("o_ready")
pubgather(ost, sT)
TS("o_gathered")
stop(2)
def hgemm(w4, wm, write_bb, wait_fn=None):
    RB_ = 68
    A4 = a(240, 16); AM = v(96, 16)
    E(f"s_mul_i32 s{sT}, s{sW}, 10240\nv_add_u32 v10, s{sT}, v{vL16}")
    def rd(i): E(f"ds_read_b128 {v(RB_+4*((i-10)%7),4)}, v{6+i//10} offset:{(i%10)*1024}")
    for i in range(10):
        E(f"{MF} {A4}, {w4(i)}, {v(G+4*i,4)}, {'0' if i == 0 else A4}")
        if write_bb: E(f"ds_write_b128 v10, {v(G+4*i,4)} offset:{i*1024}")
        if 1 <= i <= 3:
            E(f"""s_add_u32 s{sT}, s{sW}, {i}
            s_and_b32 s{sT}, s{sT}, 3
            s_mul_i32 s{sT}, s{sT}, 10240
            v_add_u32 v{6+i}, s{sT}, v{vL16}""")
    for i in range(40):
        if wait_fn: wait_fn(i)
        if i >= 10:
            E(f"s_waitcnt lgkmcnt({min(5, 39-i)})")
        src_ = v(G+4*i, 4) if i < 10 else v(RB_+4*((i-10) % 7), 4)
        E(f"{MF} {AM}, {wm(i)}, {src_}, {'0' if i == 0 else AM}")
        if i == 0:
            E(f"""s_lshl_b32 s{sT}, s{sW}, 12
            s_add_u32 s{sT}, s{sT}, {P4}
            v_add_u32 v10, s{sT}, v{vL16}
            s_lshl_b32 s{sT}, s{sW}, 10
            s_add_u32 s{sT}, s{sT}, {P4}
            v_add_u32 v56, s{sT}, v{vL16}""")
        if i == 1 and write_bb: E("s_waitcnt lgkmcnt(0)\ns_barrier")
        if 2 <= i <= 7: rd(8 + i)
        if i == 8:
            for q in range(4): E(f"ds_write_b128 v10, {a(240+4*q,4)} offset:{q*1024}")
        if i >= 10 and i + 6 < 40: rd(i + 6)
        if i == 33: E("s_barrier")
        if i == 34:
            pass
    for wr in range(4): E(f"ds_read_b128 {v(68+4*wr,4)}, v56 offset:{wr*4096}")
    E("s_waitcnt lgkmcnt(0)\ns_barrier")
    sum4q(112, 68, 4)
E.c("output projection + residual")
hgemm(lambda i: a(WOq[i], 4), lambda i: a(WOq[10+i], 4), True)
E("s_nop 1")
for i in range(10):
    E(f"""v_lshlrev_b32 v5, 16, v{vXR+i}
    v_and_b32 v6, 0xffff0000, v{vXR+i}
    v_add_f32 v5, v5, v{96+2*i}
    v_add_f32 v6, v6, v{97+2*i}
    v_cvt_pk_bf16_f32 v{vXR+i}, v5, v6""")
E(f"""s_mul_i32 s{sT}, s{sW}, 2560
s_add_u32 s{sT}, s{sT}, s{sT+9}
s_add_u32 s{sT}, s{sT}, {WS_VB}
v_lshlrev_b32 v7, 4, v{vJ}
v_lshl_add_u32 v7, v{vH}, 3, v7
s_add_u32 s{sT+1}, s{sT+10}, {WS_VB}""")
def vst(f):
    E(f"""buffer_store_dwordx4 {v(vXR,4)}, v{vL16}, {ws}, s{sT} offen {f}
    buffer_store_dwordx4 {v(vXR+4,4)}, v{vL16}, {ws}, s{sT} offen offset:1024 {f}
    buffer_store_dwordx2 {v(vXR+8,2)}, v7, {ws}, s{sT} offen offset:2048 {f}""")
TS("v_ready")
pubgather(vst, sT+1)
TS("v_gathered")
lnkv(False)
TS("ln2_done")
lnk = E.label("Lnk")
E(f"""s_cmp_lg_u32 s{sLAY}, 0
s_cbranch_scc1 {lnk}
s_add_u32 s{sKV}, s{sKV}, 0x40000
s_add_u32 s{sFLK}, s{sFLK}, 0x4000""")
kvpost()
E(f"{lnk}:")
E.c("router score, the two best tokens of this row block are published as candidates")
E(f"""v_fma_f32 v7, -v{vMU}, v{vCR}, v81
v_mul_f32 v7, v7, v{vRS}
s_lshl_b32 s{sT}, s{sRB}, 5
s_sub_u32 s{sT}, 2047, s{sT}
s_mov_b32 s{sT+1}, 0xfffff800
v_ashrrev_i32 v6, 31, v7
v_or_b32 v6, 0x80000000, v6
v_xor_b32 v6, v6, v7
v_sub_u32 v5, s{sT}, v{vJ}
v_and_or_b32 v{vKEY}, v6, s{sT+1}, v5""")
wavemax(vKEY, sT+8, 2)
E(f"v_cmp_eq_u32 s[{sEX}:{sEX+1}], s{sT+8}, v{vKEY}\ns_nop 1\nv_cndmask_b32 v8, v{vKEY}, 0, s[{sEX}:{sEX+1}]")
wavemax(8, sT+9, 2)
lr = E.label("Lr")
E(f"""v_cmp_eq_u32 vcc, s{sT+9}, v{vKEY}
s_mul_i32 s{sT}, s{sRB}, 2560
s_mul_i32 s{sT+1}, s{sCB}, 320
s_add_u32 s{sT}, s{sT}, s{sT+1}
s_mul_i32 s{sT+1}, s{sW}, 80
s_add_u32 s{sT}, s{sT}, s{sT+1}
s_add_u32 s{sT}, s{sT}, s{sSM}
s_add_u32 s{sT}, s{sT}, {SM_CAND}
v_cndmask_b32 v5, 0, 1, vcc
s_or_b64 exec, vcc, s[{sEX}:{sEX+1}]
v_mul_u32_u24 v6, 1280, v5
v_lshl_add_u32 v8, v{vH}, 4, v6
v_lshl_add_u32 v9, v{vH}, 3, v6
buffer_store_dwordx4 {v(vXR,4)}, v8, {ws}, s{sT} offen sc1
buffer_store_dwordx4 {v(vXR+4,4)}, v8, {ws}, s{sT} offen offset:32 sc1
buffer_store_dwordx2 {v(vXR+8,2)}, v9, {ws}, s{sT} offen offset:64 sc1
s_or_b32 s{sT}, s{sCB}, s{sW}
s_cmp_lg_u32 s{sT}, 0
s_cbranch_scc1 {lr}
v_mov_b32 v56, v{vKEY}
v_mov_b32 v57, v{vMU}
v_mov_b32 v58, v{vRS}
v_mov_b32 v59, v7
v_lshlrev_b32 v5, 4, v5
v_lshl_add_u32 v5, v{vH}, 30, v5
s_lshl_b32 s{sT}, s{sRB}, 5
s_add_u32 s{sT}, s{sT}, s{sSM}
buffer_store_dwordx4 v[56:59], v5, {ws}, s{sT} offen sc1
{lr}:
s_mov_b64 exec, -1""")
TS("r_stored")
def x2():
    E(f"v_mul_f32 v7, v{vMU}, v{vRS}\nv_add_f32 v8, 1.0, v{vRS}")
    for i in range(10):
        E(f"""v_lshlrev_b32 v5, 16, v{vXR+i}
        v_and_b32 v6, 0xffff0000, v{vXR+i}
        v_fma_f32 v5, v5, v8, -v7
        v_fma_f32 v6, v6, v8, -v7
        v_cvt_pk_bf16_f32 v{vXR+i}, v5, v6""")
E(f"s_cmp_lg_u32 s{sLAY}, 0\ns_cbranch_scc1 L_tail")
qseg()
wl_ = [wfrag_load(a(4*(i-NPRE), 4), 10+i, sT) for i in range(NPRE, 40)]
body_ = cap(x2) + cap(center)
body_ = [x.replace(f"s{sT},", f"s{sT+6},").replace(f"s{sT+1},", f"s{sT+7},") for x in body_]
for i, x in enumerate(body_):
    E(x)
    if i % 5 == 4 and wl_: E(wl_.pop(0))
    if i == 84: kvflag(17, sT+10)
for x in wl_: E(x)
E.c("the two candidate tokens are moved into the last attention round (their q may still change)")
E(f"""s_and_b32 s{sT+8}, s{sT+8}, 31
s_and_b32 s{sT+9}, s{sT+9}, 31
s_sub_u32 s{sT+8}, 31, s{sT+8}
s_sub_u32 s{sT+9}, 31, s{sT+9}
s_cmp_eq_u32 s{sT+9}, 31
s_cselect_b32 s{sT+4}, 30, 31
s_cmp_eq_u32 s{sT+8}, 29
s_cselect_b32 s{sT+5}, 28, 29
s_cmp_ge_u32 s{sT+8}, 24
s_cselect_b32 s{sT+8}, s{sT+4}, s{sT+8}
s_cmp_ge_u32 s{sT+9}, 24
s_cselect_b32 s{sT+9}, s{sT+5}, s{sT+9}""")
for r_ in (vPI, vOT):
    E(f"v_mov_b32 v5, v{r_}")
    for x_, y_ in ((sT+8, sT+4), (sT+4, sT+8), (sT+9, sT+5), (sT+5, sT+9)):
        E(f"v_cmp_eq_u32 vcc, s{x_}, v5\nv_mov_b32 v6, s{y_}\ns_nop 0\nv_cndmask_b32 v{r_}, v{r_}, v6, vcc")
E(f"""s_mov_b32 s{sLAY}, 1
s_mov_b32 s{sF}, s{sSM}
s_add_u32 s{sSM}, s{sSM}, {SM_L}""")
def wf(i):
    if i >= NPRE and (i-NPRE) % 4 == 0: E(f"s_waitcnt vmcnt({max(0, 40-i-4)})")
hgemm(lambda i: v(vF4+4*i, 4), lambda i: v(vWP+4*i, 4) if i < NPRE else a(4*(i-NPRE), 4), True, wf)
E("s_branch L_qpost")
def ret(name, tail):
    E(f"s_cmp_eq_u32 s{sF}, {WS_SM}\ns_cbranch_scc1 L_{name}_ret")
    if tail: E(f"s_branch {tail}")
def retry(regs, reload_, pre="s_waitcnt vmcnt(0)", extra=None):
    l1 = E.label("Lrt"); l2 = E.label("Lrt")
    E(f"s_mov_b32 s{sT+11}, 0x80000\n{l1}:\n{pre}")
    (maxtree2 if len(regs) > 8 else (lambda r, t, _: maxtree(r, t)))(regs, 5, 6)
    if extra: extra()
    E(f"""v_cmp_eq_u32 vcc, -1, v5
    s_sub_u32 s{sT+11}, s{sT+11}, 1
    s_cbranch_scc1 {l2}
    s_nop 2
    s_cbranch_vccz {l2}""")
    reload_()
    E(f"s_waitcnt vmcnt(0)\ns_branch {l1}\n{l2}:")
def sel2(d, a_, b_, mask="vcc"):
    E(f"v_mov_b32 v{d}, s{a_}\nv_mov_b32 v10, s{b_}\nv_cndmask_b32 v{d}, v{d}, v10, {mask}")
U = 168
def uinit():
    E(f"v_mov_b32 v5, 0x3f803f80\nv_cmp_eq_u32 vcc, 2, v{vJ}\ns_nop 1\nv_cndmask_b32 v{U}, 0, v5, vcc")
    for i in range(1, 40): E(f"v_mov_b32 v{U+i}, v{U}")
E("L_tail:")
E(f"s_mov_b32 s{sF}, s{sSM}")
rcloads()
x2()
uinit()
E("s_waitcnt vmcnt(0)")
E("L_top2:")
E.c("router top-2 over the 128 candidates")
retry(range(208, 216), rcloads, pre="")
TS("r_gathered", True)
E("v_max_u32 v8, v208, v212\nv_min_u32 v9, v208, v212")
wavemax(8, sK1)
E(f"v_cmp_eq_u32 vcc, s{sK1}, v8\ns_nop 1\nv_cndmask_b32 v8, v8, v9, vcc")
wavemax(8, sK2)
for K_, I_, M_, S_, R_, O_ in ((sK1, sI1, sM1, sS1, sR1, sO1), (sK2, sI2, sM2, sS2, sR2, sO2)):
    E(f"""v_cmp_eq_u32 vcc, s{K_}, v212
    v_cmp_eq_u32 s[{sEX}:{sEX+1}], s{K_}, v208
    s_and_b32 s{I_}, s{K_}, 2047
    s_sub_u32 s{I_}, 2047, s{I_}
    v_cndmask_b32 v5, v209, v213, vcc
    v_cndmask_b32 v6, v210, v214, vcc
    v_cndmask_b32 v7, v211, v215, vcc
    s_cmp_lg_u64 vcc, 0
    s_cselect_b32 s{sT+1}, 64, 0
    s_or_b64 vcc, vcc, s[{sEX}:{sEX+1}]
    s_ff1_i32_b64 s{sT}, vcc
    s_add_u32 s{sT+1}, s{sT+1}, s{sT}
    s_mul_i32 s{O_}, s{sT+1}, 1280
    s_nop 1
    v_readlane_b32 s{M_}, v5, s{sT}
    v_readlane_b32 s{S_}, v6, s{sT}
    v_readlane_b32 s{R_}, v7, s{sT}""")
E(f"""s_lshl_b32 s{sT}, s{sRB}, 5
v_add_u32 v5, s{sT}, v{vJ}
v_cmp_eq_u32 vcc, s{sI1}, v5
v_cmp_eq_u32 s[{sEX}:{sEX+1}], s{sI2}, v5
s_mov_b32 s{sROLE}, 8
s_nop 2
s_or_b64 s[{sSP}:{sSP+1}], vcc, s[{sEX}:{sEX+1}]
s_cselect_b32 s{sROLE}, 12, 8""")
TS("top2", True)
E(f"""s_cmp_ge_u32 s2, 128
s_cbranch_scc1 L_d1
s_cmp_ge_u32 s2, 108
s_cbranch_scc1 L_nof
s_or_b32 s{sROLE}, s{sROLE}, 1""")
U = 168
E.c("FFN gate/up for the two routed tokens (LayerNorm folded in: rs*(v.W - mu*colsum(W)))")
def uloads():
    E(f"""v_cmp_eq_u32 vcc, 1, v{vJ}
    s_mul_i32 s{sT+2}, s{sW}, 320
    s_add_u32 s{sT+2}, s{sT+2}, s{sF}
    s_add_u32 s{sT+2}, s{sT+2}, {SM_CAND}""")
    sel2(7, sO1, sO2)
    E(f"""v_lshl_add_u32 v7, v{vH}, 4, v7
    s_mov_b32 s{sEX}, 3
    s_mov_b32 s{sEX+1}, 3
    s_mov_b64 exec, s[{sEX}:{sEX+1}]""")
    for k in range(10):
        E(f"buffer_load_dwordx4 {v(U+4*k,4)}, v7, {ws}, s{sT+2} offen offset:{k*32} sc1")
    E("s_mov_b64 exec, -1")
uloads()
ret("top2", None)
E(f"""L_u2:
s_mul_i32 s{sT}, s{sW}, 10240
s_add_u32 s{sT}, s{sT}, {FFNW}
v_bfe_u32 v5, v{vL}, 2, 2
v_lshl_add_u32 v5, v{vH}, 3, v5
v_lshlrev_b32 v5, 5, v5
v_and_b32 v6, 3, v{vL}
v_lshl_add_u32 v5, v6, 3, v5
v_bfe_u32 v6, v{vL}, 4, 1
v_mul_u32_u24 v6, 5120, v6
v_add3_u32 v11, v5, v6, s{sT}""")
def utr(h_):
    for k in range(5*h_, 5*h_+5):
        for u in range(2):
            E(f"ds_read_b64_tr_b16 {v(208+4*(k%5)+2*u,2)}, v11 offset:{k*512+u*128}")
utr(0)
lw_ = E.label("Luw")
E(f"s_cmp_eq_u32 s{sF}, {WS_SM}\ns_cbranch_scc1 {lw_}\ns_waitcnt vmcnt(0)\n{lw_}:")
retry(range(U, U+40), uloads, pre=f"s_waitcnt vmcnt({sum(nld(u) for u in (7,8,9,10,11)) + 1})")
def pwrite(acc, area=0, bar=True):
    E(f"""s_lshl_b32 s{sT}, s{sW}, 10
    s_add_u32 s{sT}, s{sT}, {FPC+area}
    v_lshl_add_u32 v5, v{vH}, 3, v{vJ}
    v_lshl_add_u32 v5, v5, 4, s{sT}
    s_mov_b32 s{sEX}, 0xff
    s_mov_b32 s{sEX+1}, 0xff
    s_nop 5
    s_mov_b64 exec, s[{sEX}:{sEX+1}]""")
    for g in range(4): E(f"ds_write_b128 v5, {v(acc+4*g,4)} offset:{g*256}")
    E("s_mov_b64 exec, -1")
    if bar: E("s_waitcnt lgkmcnt(0)\ns_barrier")
E("s_waitcnt lgkmcnt(0)")
for k in range(5): E(f"{MF} v[228:243], {v(208+4*k,4)}, {v(U+4*k,4)}, {'0' if k == 0 else 'v[228:243]'}")
utr(1)
E("s_waitcnt lgkmcnt(0)")
for k in range(5, 10): E(f"{MF} v[228:243], {v(208+4*(k%5),4)}, {v(U+4*k,4)}, v[228:243]")
pwrite(228)
lue = E.label("Lue")
E(f"""s_cmp_lg_u32 s{sW}, 0
s_cbranch_scc1 {lue}
v_bfe_u32 v5, v{vL}, 3, 1
v_lshlrev_b32 v5, 8, v5
v_bfe_u32 v6, v{vL}, 2, 1
v_lshl_add_u32 v5, v6, 7, v5
v_and_b32 v7, 3, v{vL}
v_lshl_add_u32 v5, v7, 2, v5
v_add_u32 v5, {FPC}, v5
v_bfe_u32 v6, v{vL}, 4, 1
v_lshl_add_u32 v7, v6, 4, v5
v_cmp_eq_u32 vcc, 1, v6""")
for wr in range(4):
    E(f"""ds_read_b32 v{208+wr}, v7 offset:{wr*1024}
    ds_read_b32 v{212+wr}, v7 offset:{wr*1024+512}
    ds_read_b32 v{216+wr}, v5 offset:{wr*1024+32}
    ds_read_b32 v{220+wr}, v5 offset:{wr*1024+512+32}""")
sel2(8, sM1, sM2); sel2(9, sS1, sS2)
E("s_waitcnt lgkmcnt(0)")
for b in (208, 212, 216, 220):
    E(f"v_add_f32 v{b}, v{b}, v{b+1}\nv_add_f32 v{b+2}, v{b+2}, v{b+3}\nv_add_f32 v{b}, v{b}, v{b+2}")
E(f"""v_fma_f32 v208, -v8, v216, v208
v_fma_f32 v212, -v8, v220, v212
v_mul_f32 v208, v208, v9
v_mul_f32 v212, v212, v9
v_mul_f32 v209, {f2u(-L2E)}, v208
v_exp_f32 v209, v209
v_mul_f32 v208, v208, v212
v_add_f32 v209, 1.0, v209
v_rcp_f32 v209, v209
v_mul_u32_u24 v6, 3456, v6
v_mul_f32 v208, v208, v209
v_and_b32 v7, 15, v{vL}
v_lshl_add_u32 v6, v7, 1, v6
v_mov_b32_dpp v209, v208 quad_perm:[1,0,3,2] row_mask:0xf bank_mask:0xf
s_lshl_b32 s{sT}, s2, 5
v_cvt_pk_bf16_f32 v208, v208, v209
s_add_u32 s{sT}, s{sT}, s{sF}
s_add_u32 s{sT}, s{sT}, {SM_H}
s_mov_b64 exec, 0x55555555
buffer_store_dword v208, v6, {ws}, s{sT} offen sc1
s_mov_b64 exec, -1""")
TS("up_done", True)
E(f"{lue}:")
ret("u2", "L_final")
E(f"""L_nof2:
s_cmp_le_u32 s2, 228
s_cselect_b32 s{sT}, 16, 0
s_cmp_eq_u32 s2, 232
s_cselect_b32 s{sT}, 16, s{sT}
s_or_b32 s{sROLE}, s{sROLE}, s{sT}""")
E("L_nof:")
ret("top2", "L_final")
E(f"""L_d1:
s_cmp_ge_u32 s2, 208
s_cbranch_scc1 L_nof2
s_or_b32 s{sROLE}, s{sROLE}, 2""")
E.c("FFN down projection, 8 columns per workgroup")
E(f"""s_mul_i32 s{sT}, s{sW}, 10240
s_add_u32 s{sT}, s{sT}, {FFNW}
v_bfe_u32 v5, v{vL}, 2, 2
v_lshl_add_u32 v5, v{vH}, 3, v5
v_bfe_u32 v6, v{vL}, 4, 1
v_lshl_add_u32 v5, v6, 5, v5
v_bfe_u32 v6, v{vL}, 1, 1
v_lshl_add_u32 v5, v6, 4, v5
v_lshlrev_b32 v5, 4, v5
v_and_b32 v6, 1, v{vL}
v_lshl_add_u32 v5, v6, 3, v5
v_add_u32 v5, s{sT}, v5""")
for k in range(7):
    for u in range(2):
        E(f"ds_read_b64_tr_b16 {v(212+4*k+2*u,2)}, v5 offset:{k*1024+u*64}")
E(f"v_bfe_u32 v5, v{vL}, 3, 1\nv_cmp_eq_u32 vcc, 1, v5")
sel2(242, sR1, sR2); sel2(241, sO1, sO2)
E(f"""v_and_b32 v7, 7, v{vL}
v_lshl_add_u32 v241, v7, 1, v241
v_bfe_u32 v5, v{vL}, 2, 1
v_mul_u32_u24 v5, 3456, v5
v_and_b32 v6, 3, v{vL}
v_lshl_add_u32 v5, v6, 5, v5
v_lshl_add_u32 v5, v{vH}, 4, v5
v_lshrrev_b32 v6, 3, v{vJ}
v_mul_f32 v242, {f2u(-L2E)}, v242
v_exp_f32 v242, v242
v_lshl_add_u32 v240, v6, 28, v5
v_add_f32 v242, 1.0, v242
v_rcp_f32 v242, v242""")
ret("top2", None)
def hloads():
    E(f"""s_sub_u32 s{sT+3}, s2, 128
    s_lshl_b32 s{sT+4}, s{sT+3}, 4
    s_add_u32 s{sT+4}, s{sT+4}, s{sF}
    s_add_u32 s{sT+4}, s{sT+4}, {SM_CAND}
    s_mul_i32 s{sT}, s{sW}, 896
    s_add_u32 s{sT}, s{sT}, s{sF}
    s_add_u32 s{sT}, s{sT}, {SM_H}
    s_cmp_eq_u32 s{sW}, 3
    s_cselect_b32 s{sT+1}, {OOB}, s{sT}""")
    for k in range(7):
        E(f"buffer_load_dwordx4 {v(U+4*k,4)}, v240, {ws}, s{sT+(1 if k == 6 else 0)} offen offset:{k*128} sc1")
    E(f"buffer_load_ushort v243, v241, {ws}, s{sT+4} offen sc1")
E("L_dh:")
hloads()
ret("dh", None)
E("L_d2:")
retry(range(U, U+28), hloads, extra=lambda: E("v_lshl_or_b32 v6, v243, 16, v243\nv_max_u32 v5, v5, v6"))
TS("h_gathered", True)
E("s_waitcnt lgkmcnt(0)")
for k in range(7):
    E(f"{MF} v[196:211], {v(212+4*k,4)}, {v(U+4*k,4)}, {'0' if k == 0 else 'v[196:211]'}")
pwrite(196)
ldo = E.label("Ldo"); lde = E.label("Lde")
E(f"""s_cmp_lg_u32 s{sW}, 0
s_cbranch_scc1 {lde}
v_bfe_u32 v11, v{vL}, 3, 1
v_lshlrev_b32 v5, 6, v11
v_bfe_u32 v6, v{vL}, 2, 1
v_lshl_add_u32 v5, v6, 7, v5
v_and_b32 v6, 3, v{vL}
v_lshl_add_u32 v5, v6, 2, v5
v_add_u32 v5, {FPC}, v5
v_cmp_eq_u32 vcc, 1, v11""")
for wr in range(4):
    for kq in range(4):
        E(f"ds_read_b32 v{U+4*wr+kq}, v5 offset:{wr*1024+kq*256+kq*16}")
sel2(8, sM1, sM2); sel2(9, sS1, sS2); sel2(7, sI1, sI2)
E(f"""v_lshlrev_b32 v243, 16, v243
v_sub_f32 v241, v243, v8
v_fmac_f32 v243, v241, v9
v_and_b32 v6, 7, v{vL}
s_sub_u32 s{sT}, s2, 128
s_lshl_b32 s{sT}, s{sT}, 4
s_waitcnt lgkmcnt(0)""")
sum8(U, U); sum8(U+8, U+8)
E(f"""v_add_f32 v{U}, v{U}, v{U+8}
v_fmac_f32 v243, v{U}, v242
v_lshlrev_b32 v6, 1, v6
s_cmp_lg_u32 s{sF}, {WS_SM}
v_mov_b32_dpp v241, v243 quad_perm:[1,0,3,2] row_mask:0xf bank_mask:0xf
s_nop 0
v_cvt_pk_bf16_f32 v243, v243, v241
s_cbranch_scc1 {ldo}
v_mul_u32_u24 v5, 1280, v11
v_add_u32 v6, v5, v6
s_add_u32 s{sT}, s{sT}, {WS_SM+SM_XS}
s_mov_b64 exec, 0x5555
buffer_store_dword v243, v6, {ws}, s{sT} offen sc1
s_mov_b64 exec, -1
s_branch L_d2_ret
{ldo}:""")
srd(XO, pOUT, 2621440)
E(f"""v_mul_u32_u24 v5, 1280, v7
v_add_u32 v6, v5, v6
s_mov_b64 exec, 0x5555
buffer_store_dword v243, v6, s[{XO}:{XO+3}], s{sT} offen
s_mov_b64 exec, -1""")
TS("down_done")
E(f"{lde}:")
ret("d2", None)
E("L_final:")
srd(XO, pOUT, 2621440)
E(f"""s_mul_i32 s{sT+4}, s{sCB}, 320
s_mul_i32 s{sT+5}, s{sW}, 80
s_add_u32 s{sT+4}, s{sT+4}, s{sT+5}
s_mul_i32 s{sT}, s{sRB}, 40960
s_add_u32 s{sT+4}, s{sT+4}, s{sT}
v_mul_u32_u24 v5, 1280, v{vJ}
v_lshl_add_u32 v6, v{vH}, 3, v5
v_lshl_add_u32 v5, v{vH}, 4, v5
s_andn2_b64 exec, exec, s[{sSP}:{sSP+1}]
buffer_store_dwordx4 {v(vXR,4)}, v5, s[{XO}:{XO+3}], s{sT+4} offen
buffer_store_dwordx4 {v(vXR+4,4)}, v5, s[{XO}:{XO+3}], s{sT+4} offen offset:32
buffer_store_dwordx2 {v(vXR+8,2)}, v6, s[{XO}:{XO+3}], s{sT+4} offen offset:64
s_mov_b64 exec, -1""")
TS("end")
E("L_dump:")
if PROF:
    E(f"""s_lshl_b32 s{sT}, s2, 2
    s_add_u32 s{sT}, s{sT}, s{sW}
    s_lshl_b32 s{sT}, s{sT}, 8
    s_add_u32 s{sT}, s{sT}, 0x1000000
    v_lshlrev_b32 v5, 2, v{vL}
    buffer_store_dword v253, v5, {ws}, s{sT} offen
    s_add_u32 s{sT}, s{sT}, 0x100000
    buffer_store_dword v252, v5, {ws}, s{sT} offen""")
E("L_exit2:\ns_endpgm")


spx = f"s_mov_b64 exec, s[{sSP}:{sSP+1}]"
def hxs():
    E(f"""v_mul_u32_u24 v7, 1280, v{vJ}
    v_lshl_add_u32 v7, v{vH}, 4, v7
    s_mul_i32 s{sT+2}, s{sW}, 320
    s_add_u32 s{sT+2}, s{sT+2}, {WS_SM+SM_XS}
    s_mov_b32 s{sEX}, 3
    s_mov_b32 s{sEX+1}, 3
    s_mov_b64 exec, s[{sEX}:{sEX+1}]""")
    for k in range(10):
        E(f"buffer_load_dwordx4 {v(U+4*k,4)}, v7, {ws}, s{sT+2} offen offset:{k*32} sc1")
    E("s_mov_b64 exec, -1")
def sqloads():
    for i in range(5):
        E(f"buffer_load_dwordx4 {v(224+4*i,4)}, v{va3(i)}, {ws}, s{sSQ} offen offset:{(i%4)*1024} sc1")
E(f"""L_h1:
s_sub_u32 s{sT}, s2, 208
s_min_u32 s{sT}, s{sT}, 19
s_mul_i32 s{sSQ}, s{sT}, 40960
s_mul_i32 s{sT}, s{sW}, 10240
s_add_u32 s{sSQ}, s{sSQ}, s{sT}
s_add_u32 s{sSQ}, s{sSQ}, {WS_WQF}""")
sqloads()
hxs()
E(f"""v_cmp_eq_u32 vcc, 1, v{vH}""")
sel2(5, sI1, sI2)
lhk = E.label("Lhk")
E(f"""v_lshrrev_b32 v6, 5, v5
s_cmp_eq_u32 s2, 232
s_cbranch_scc0 {lhk}
v_mul_u32_u24 v6, 1344, v6
v_bfe_u32 v7, v5, 4, 1
v_mul_u32_u24 v7, 672, v7
v_bfe_u32 v8, v5, 2, 1
v_mul_u32_u24 v8, 336, v8
v_add3_u32 v6, v6, v7, v8
v_bfe_u32 v7, v5, 3, 1
v_lshl_add_u32 v6, v7, 3, v6
v_and_b32 v7, 3, v5
v_lshl_add_u32 v6, v7, 1, v6
v_lshl_add_u32 v6, v{vJ}, 4, v6
s_add_u32 s{sT}, s{sKV}, {VOFF}
buffer_load_ushort v13, v6, {ws}, s{sT} offen sc1
s_branch L_h1_ret
{lhk}:
v_bfe_u32 v7, v{vJ}, 2, 1
v_and_b32 v8, 31, v5
v_lshl_add_u32 v8, v7, 5, v8
v_lshlrev_b32 v8, 4, v8
v_and_b32 v9, 3, v{vJ}
v_lshl_add_u32 v8, v9, 1, v8
v_lshl_add_u32 v9, v6, 10, v8
v_bfe_u32 v7, v{vJ}, 3, 1
v_lshl_add_u32 v9, v7, 3, v9
v_lshrrev_b32 v7, 1, v6
v_lshl_add_u32 v8, v7, 10, v8
v_and_b32 v7, 1, v6
v_lshl_add_u32 v8, v7, 3, v8
v_add_u32 v8, {K2OFF}, v8
v_cmp_lt_u32 vcc, 15, v{vJ}
s_nop 1
v_cndmask_b32 v9, v9, v8, vcc
v_and_b32 v9, -4, v9
buffer_load_dword v13, v9, {ws}, s{sKV} offen sc1
s_branch L_h1_ret
L_h2:""")
retry(range(U, U+40), hxs)
TS("xs_ready")
E("v_mov_b32 v6, 0\nv_mov_b32 v7, 0")
for k in range(10):
    E(f"{MF} v[208:223], {v(vF6+4*k,4)}, {v(U+4*k,4)}, {'0' if k == 0 else 'v[208:223]'}")
    for i in range(4*k, 4*k+4):
        E(f"v_dot2_f32_bf16 v{6+i%2}, v{U+i}, v{U+i}, v{6+i%2}")
E(f"s_add_u32 s{sSQ}, s{sSQ}, 5120\ns_nop 1\nv_add_f32 v7, v6, v7")
halfsum(7, 6)
E("v_mov_b32 v222, v7")
pwrite(208, 0, False)
E("s_nop 1")
for i in range(5): E(f"{MF} v[208:223], {v(224+4*i,4)}, {v(U+4*i,4)}, {'0' if i == 0 else 'v[208:223]'}")
sqloads()
E("s_branch L_h2_ret\nL_h3:\ns_waitcnt vmcnt(0)")
for i in range(5): E(f"{MF} v[208:223], {v(224+4*i,4)}, {v(U+20+4*i,4)}, v[208:223]")
pwrite(208, 4096)
lq_ = E.label("Lhq"); lv_ = E.label("Lhv")
E(f"""s_cmp_lg_u32 s{sW}, 0
s_cbranch_scc1 L_h3_ret
s_cmp_lt_u32 s2, 228
s_cselect_b32 s{sT}, {FPC+4096}, {FPC}
v_lshrrev_b32 v5, 3, v{vJ}
v_lshlrev_b32 v5, 8, v5
v_bfe_u32 v6, v{vJ}, 2, 1
v_lshl_add_u32 v5, v6, 7, v5
v_and_b32 v7, 3, v{vJ}
v_lshl_add_u32 v5, v7, 2, v5
v_add_u32 v5, s{sT}, v5
v_lshl_add_u32 v6, v{vH}, 4, v5
v_lshlrev_b32 v7, 4, v{vH}
v_add_u32 v7, {FPC+768}, v7""".replace(f"s_cselect_b32 s{sT}, {FPC+4096}, {FPC}", f"s_cselect_b32 s{sT}, 4096, 0\ns_add_u32 s{sT}, s{sT}, {FPC}"))
for wr in range(4):
    E(f"""ds_read_b32 v{208+wr}, v6 offset:{wr*1024}
    ds_read_b32 v{212+wr}, v5 offset:{wr*1024+32}
    ds_read_b32 v{216+wr}, v7 offset:{wr*1024}
    ds_read_b32 v{220+wr}, v7 offset:{wr*1024+8}""")
E("s_waitcnt lgkmcnt(0)")
for b in (208, 212, 216, 220):
    E(f"v_add_f32 v{b}, v{b}, v{b+1}\nv_add_f32 v{b+2}, v{b+2}, v{b+3}\nv_add_f32 v{b}, v{b}, v{b+2}")
E(f"""v_mul_f32 v216, {f2u(1.0/640)}, v216
v_mul_f32 v220, {f2u(1.0/640)}, v220
v_fma_f32 v220, -v216, v216, v220
v_max_f32 v220, 0, v220
v_add_f32 v220, {f2u(1e-5)}, v220
v_rsq_f32 v220, v220
v_fma_f32 v208, -v216, v212, v208
v_mul_f32 v208, v208, v220
s_cmp_eq_u32 s2, 232
s_cbranch_scc1 {lv_}
s_cmp_lt_u32 s2, 228
s_cselect_b32 s{sT}, {f2u(CSC)}, 1.0
v_mul_f32 v208, s{sT}, v208
s_mov_b32 s{sEX}, 0x55555555
s_mov_b32 s{sEX+1}, 0x55555555
v_mov_b32_dpp v209, v208 quad_perm:[1,0,3,2] row_mask:0xf bank_mask:0xf
s_nop 0
v_cvt_pk_bf16_f32 v208, v208, v209
s_cbranch_scc1 {lq_}
v_bfe_u32 v5, v{vJ}, 2, 1
v_lshl_add_u32 v5, v{vH}, 2, v5
v_and_b32 v6, 3, v{vJ}
v_lshlrev_b32 v6, 1, v6
v_lshl_add_u32 v7, v5, 4, v6
v_bfe_u32 v209, v{vJ}, 3, 1
v_lshl_add_u32 v7, v209, 3, v7
v_lshl_add_u32 v6, v5, 3, v6
v_add_u32 v6, 256, v6
v_cmp_lt_u32 vcc, 15, v{vJ}
v_add_u32 v5, 32, v7
v_add_u32 v209, 16, v6
v_cndmask_b32 v7, v7, v6, vcc
v_cndmask_b32 v5, v5, v209, vcc
s_mov_b32 s{sT}, {WS_SM+SM_LK1}
s_mov_b32 s{sEX}, 0x555555
s_mov_b32 s{sEX+1}, 0x555555
s_mov_b64 exec, s[{sEX}:{sEX+1}]
buffer_store_dword v13, v7, {ws}, s{sT} offen sc1
buffer_store_dword v208, v5, {ws}, s{sT} offen sc1
s_mov_b64 exec, -1
s_branch L_h3_ret
{lq_}:
v_mul_u32_u24 v5, 1280, v{vH}
v_lshl_add_u32 v5, v{vJ}, 1, v5
s_sub_u32 s{sT}, s2, 208
s_lshl_b32 s{sT}, s{sT}, 6
s_add_u32 s{sT}, s{sT}, {WS_SM+SM_QS}
s_mov_b64 exec, s[{sEX}:{sEX+1}]
buffer_store_dword v208, v5, {ws}, s{sT} offen sc1
s_mov_b64 exec, -1
s_branch L_h3_ret
{lv_}:
v_cvt_pk_bf16_f32 v208, v208, v208
v_xor_b32 v13, 0x8000, v13
v_mov_b32 v5, 0x3f80bf80
v_mov_b32 v6, 0x00003f80
v_cmp_eq_u32 vcc, 20, v{vJ}
v_lshl_or_b32 v208, v208, 16, v13
v_lshlrev_b32 v7, 3, v{vJ}
v_cndmask_b32 v208, v208, v5, vcc
v_cmp_eq_u32 vcc, 21, v{vJ}
v_lshl_add_u32 v7, v{vH}, 2, v7
s_mov_b32 s{sT}, {WS_SM+SM_LV}
v_cndmask_b32 v208, v208, v6, vcc
s_mov_b32 s{sEX}, 0x3fffff
s_mov_b32 s{sEX+1}, 0x3fffff
s_mov_b64 exec, s[{sEX}:{sEX+1}]
buffer_store_dword v208, v7, {ws}, s{sT} offen sc1
s_mov_b64 exec, -1
s_branch L_h3_ret""")
def sloads():
    E(f"""s_lshl_b32 s{sT}, s{sRB}, 5
    s_sub_u32 s{sT}, s{sI2}, s{sT}
    v_cmp_eq_u32 vcc, s{sT}, v{vJ}
    s_mul_i32 s{sT+4}, s{sCB}, 320
    s_mul_i32 s{sT+5}, s{sW}, 80
    v_cndmask_b32 v5, 0, 1, vcc
    v_mul_u32_u24 v5, 1280, v5
    v_lshl_add_u32 v7, v{vH}, 3, v5
    v_lshl_add_u32 v8, v{vH}, 4, v5
    s_add_u32 s{sT}, s{sT+4}, {WS_SM+SM_QS}
    s_lshl_b32 s{sT+1}, s{sW}, 6
    s_add_u32 s{sT+1}, s{sT+1}, s{sT}
    s_lshl_b32 s{sT+2}, s{sW}, 4
    s_add_u32 s{sT+2}, s{sT+2}, s{sT}
    s_add_u32 s{sT+4}, s{sT+4}, s{sT+5}
    s_add_u32 s{sT+4}, s{sT+4}, {WS_SM+SM_XS}
    {spx}""")
    for q in range(4): E(f"buffer_load_dwordx2 {v(168+2*q,2)}, v7, {ws}, s{sT+1} offen offset:{16*q} sc1")
    E(f"""buffer_load_dwordx2 v[176:177], v7, {ws}, s{sT+2} offen offset:256 sc1
    buffer_load_dwordx4 {v(vXR,4)}, v8, {ws}, s{sT+4} offen sc1
    buffer_load_dwordx4 {v(vXR+4,4)}, v8, {ws}, s{sT+4} offen offset:32 sc1
    buffer_load_dwordx2 {v(vXR+8,2)}, v7, {ws}, s{sT+4} offen offset:64 sc1""")
E("L_s1:")
sloads()
E("s_mov_b64 exec, -1\ns_branch L_s1_ret\nL_s2:")
E(spx)
def rl():
    E("s_mov_b64 exec, -1"); sloads()
retry(list(range(168, 178)) + list(range(vXR, vXR+10)), rl)
E(f"""s_lshl_b32 s{sT}, s{sW}, 11
s_add_u32 s{sT}, s{sT}, {QAREA}
s_lshl_b32 s{sT+1}, s{sW}, 9
s_add_u32 s{sT+1}, s{sT+1}, {QAREA+8192}
v_lshl_add_u32 v7, v{vH}, 5, v{vPI}
v_lshl_add_u32 v6, v7, 4, s{sT}
v_lshl_add_u32 v7, v7, 3, s{sT+1}
ds_write_b128 v6, v[168:171]
ds_write_b128 v6, v[172:175] offset:1024
ds_write_b64 v7, v[176:177]
s_mov_b64 exec, -1""")
TS("s2_done")
E("s_waitcnt lgkmcnt(0)\ns_barrier\ns_branch L_s2_ret")
def ltloads():
    E(f"""v_lshl_add_u32 v5, v{vJ}, 1, v{vH}
    v_lshrrev_b32 v6, 2, v{vJ}
    v_lshlrev_b32 v6, 28, v6
    v_lshl_add_u32 v7, v5, 4, v6
    v_lshl_add_u32 v8, v5, 3, v6
    v_cmp_lt_u32 vcc, 21, v{vL}
    v_lshlrev_b32 v9, 3, v{vL}
    v_mov_b32 v10, {OOB}
    s_mov_b32 s{sT}, {WS_SM+SM_LK1}
    v_cndmask_b32 v9, v9, v10, vcc
    buffer_load_dwordx4 v[168:171], v7, {ws}, s{sT} offen sc1
    buffer_load_dwordx2 v[172:173], v8, {ws}, s{sT} offen offset:256 sc1
    buffer_load_dwordx2 v[176:177], v9, {ws}, s{sT} offen offset:512 sc1""")
E("L_lt1:")
ltloads()
E(f"""s_lshl_b32 s{sT}, s{sW}, 7
s_lshl_b32 s{sT+1}, s{sW}, 6
v_add_u32 v5, s{sT}, v{vQa}
v_add_u32 v6, s{sT+1}, v{vQb}
ds_read_b128 v[180:183], v5
ds_read_b128 v[184:187], v5 offset:1024
ds_read_b64 v[188:189], v6
v_mov_b32 v178, 0
v_mov_b32 v179, 0
s_branch L_lt1_ret
L_lt2:
v_mov_b32 v190, v6
v_mov_b32 v191, v7""")
retry([168, 169, 170, 171, 172, 173, 176, 177], ltloads, pre=f"s_waitcnt vmcnt({sum(len(rel[t]) for t in (11,12,13,14,15)) - 4})")
E(f"""{MF} v[16:31], v[168:171], v[180:183], 0
{MF} v[32:47], v[168:171], v[184:187], 0
v_mov_b32 v6, v190
v_mov_b32 v7, v191
s_nop 7
v_mfma_f32_32x32x4_2b_bf16 v[16:47], v[172:173], v[188:189], v[16:47]
s_nop 15
s_nop 3""")
for b in (16, 32):
    for i in range(4): E(f"v_exp_f32 v{b+i}, v{b+i}")
E("s_nop 0")
for b, p_ in ((16, 80), (32, 88)):
    E(f"v_cvt_pk_bf16_f32 v{p_}, v{b}, v{b+1}\nv_cvt_pk_bf16_f32 v{p_+1}, v{b+2}, v{b+3}\nv_mov_b32 v{p_+2}, 0\nv_mov_b32 v{p_+3}, 0")
E(f"""s_nop 1
{MF} v[208:223], v[176:179], v[80:83], 0
{MF} v[224:239], v[176:179], v[88:91], 0
s_branch L_lt2_ret""")
E("L_wqf:")
for k in range(10):
    l = E.label("Lfs")
    E(f"s_cmp_lg_u32 s{sRB}, {k}\ns_cbranch_scc1 {l}")
    for g in range(4):
        E(f"""s_add_u32 s{sT}, s{sW}, {g}
        s_and_b32 s{sT}, s{sT}, 3
        s_mul_i32 s{sT}, s{sT}, 10240
        s_add_u32 s{sT}, s{sT}, s{sT+8}
        buffer_store_dwordx4 {a(4*(10*g+k),4)}, v{vL16}, {ws}, s{sT} offen sc1""")
    E(f"""s_mul_i32 s{sT}, s{sW}, {10240-40960}
    s_add_u32 s{sT}, s{sT}, s{sT+8}
    s_add_u32 s{sT}, s{sT}, 163840
    buffer_store_dwordx4 {v(vF4+4*k,4)}, v{vL16}, {ws}, s{sT} offen sc1""")
    E(f"s_branch L_wqf_ret\n{l}:")
E("s_branch L_wqf_ret")
E(f"""L_loc:
s_lshl_b32 s{sT+2}, s{sRB}, 8
s_add_u32 s{sT+2}, s{sT+2}, {WS_FL+0x10000}
s_lshr_b32 s{sT+3}, s{sLOC}, 4
s_mov_b32 s{sT+11}, 0x80000
s_waitcnt vmcnt(7)
L_h10s:
v_lshrrev_b32 v5, 4, v13
v_cmp_ne_u32 vcc, s{sT+3}, v5
s_sub_u32 s{sT+11}, s{sT+11}, 1
s_cbranch_scc1 L_h10t
s_nop 2
s_cbranch_vccz L_h10t
v_and_b32 v6, 3, v{vL}
v_lshlrev_b32 v6, 6, v6
buffer_load_dword v13, v6, {ws}, s{sT+2} offen sc1
s_waitcnt vmcnt(0)
s_branch L_h10s
L_h10t:
v_cmp_ne_u32 vcc, s{sLOC}, v13
s_or_b32 s{sT}, s2, s{sW}
s_cmp_eq_u32 s{sT}, 0
s_cselect_b32 s{sT}, 0, {OOB}""")
signal(sT)
E(f"""s_cmp_eq_u64 vcc, 0
s_cselect_b32 s{sLOC}, 1, 0
s_branch L_loc_ret
L_hook10:
v_bfe_u32 v5, v{vL}, 2, 2
v_lshl_add_u32 v5, v{vH}, 3, v5
v_lshlrev_b32 v5, 6, v5
v_bfe_u32 v6, v{vL}, 4, 1
v_and_b32 v7, 3, v{vL}
v_lshrrev_b32 v8, 1, v7
v_and_b32 v9, 1, v7
v_lshl_add_u32 v8, v9, 1, v8
s_cmp_eq_u32 s{sTT}, 4
s_cselect_b64 vcc, -1, 0
s_mul_i32 s{sT}, s{sW}, {PREG}
s_add_u32 s{sT}, s{sT}, {WOPREP}
v_cndmask_b32 v7, v8, v7, vcc
v_lshl_add_u32 v7, v6, 2, v7
v_lshl_add_u32 v5, v7, 3, v5
v_add_u32 v5, s{sT}, v5
ds_read_b64_tr_b16 v[208:209], v5
ds_read_b64_tr_b16 v[210:211], v5 offset:256
v_mov_b32 v8, -1
v_mov_b32 v9, -1
v_mov_b32 v10, -1
v_mov_b32 v11, -1
s_mul_i32 s{sT}, s{sG}, 384
s_add_u32 s{sT}, s{sT}, {WS_SM}
s_mov_b64 exec, 0xffffff
buffer_store_dwordx4 v[8:11], v{vL16}, {ws}, s{sT} offen sc1
s_mov_b64 exec, -1
s_lshl_b32 s{sT}, s{sG}, 10
s_add_u32 s{sT}, s{sT}, {WS_WOF}
s_cmp_ge_u32 s{sG}, 800
s_cselect_b32 s{sT}, {OOB}, s{sT}
s_waitcnt lgkmcnt(0)
buffer_store_dwordx4 v[208:211], v{vL16}, {ws}, s{sT} offen sc1""")
segoffs(WS_WOF, 204800)
E(f"""s_branch L_hook10_ret
L_idle:
s_cmp_eq_u32 s{sLAY}, 0
s_cbranch_scc1 L_h28a
s_mov_b32 s{WG+2}, 0
s_mov_b32 s{T2+2}, 0
s_mov_b32 m0, {LDS_BYTES}""")
uinit()
E(f"""s_branch L_idle_ret
L_hook28:
s_lshl_b32 s{sT}, s2, 6
s_add_u32 s{sT}, s{sT}, s{sFLK}
s_add_u32 s{sT}, s{sT}, 0x8000""")
signal(sT)
E(f"""s_branch L_hookret28
L_h28a:
s_mul_i32 s{sT+1}, s{sW}, 10240
s_add_u32 m0, s{sT+1}, {FFNW}
s_mov_b32 s{sT+2}, 108
s_cmp_ge_u32 s2, 128
s_cbranch_scc1 L_h28d
s_cmp_lt_u32 s2, s{sT+2}
s_cselect_b32 s{WG+2}, 2211840, 0
s_mov_b32 s{sD5+1}, 0
s_mov_b32 s{WG}, s{pG}
s_mov_b32 s{WG+1}, s{pG+1}
s_mov_b32 s{WG+3}, 0x20000
s_mov_b32 s{T2}, s{pU}
s_mov_b32 s{T2+1}, s{pU+1}
s_mov_b32 s{T2+2}, s{WG+2}
s_mov_b32 s{T2+3}, 0x20000
s_mul_i32 s{sDS}, s{sW}, {160*3456}
s_lshl_b32 s{sT+1}, s2, 5
s_add_u32 s{sDS}, s{sDS}, s{sT+1}
s_mov_b32 s{sD5}, s{sDS}
s_mov_b32 s{sDT}, 110592
v_lshrrev_b32 v12, 1, v{vL}
v_mul_u32_u24 v12, 3456, v12
v_and_b32 v6, 1, v{vL}
v_lshl_add_u32 v12, v6, 4, v12
s_branch L_idle_ret
L_h28d:
s_add_u32 s{sT+2}, s{sT+2}, 100
s_cmp_lt_u32 s2, s{sT+2}
s_cselect_b32 s{WG+2}, 2211840, 0
s_mov_b32 s{sD5+1}, {OOB}
s_mov_b32 s{WG}, s{pD}
s_mov_b32 s{WG+1}, s{pD+1}
s_mov_b32 s{WG+3}, 0x20000
s_mov_b32 s{T2}, s{pD}
s_mov_b32 s{T2+1}, s{pD+1}
s_mov_b32 s{T2+2}, s{WG+2}
s_mov_b32 s{T2+3}, 0x20000
s_sub_u32 s{sT}, s2, 128
s_lshl_b32 s{sT}, s{sT}, 4
s_mul_i32 s{sDS}, s{sW}, {7*81920}
s_add_u32 s{sDS}, s{sDS}, s{sT}
s_add_u32 s{sD5}, s{sDS}, {5*81920}
s_mov_b32 s{sDT}, 81920
v_mul_u32_u24 v12, 1280, v{vL}
s_branch L_idle_ret
L_hook47:
s_mov_b32 s{sT+11}, 0x80000
L_h46a:
v_cmp_ne_u32 vcc, 0, v8
s_sub_u32 s{sT+11}, s{sT+11}, 1
s_cbranch_scc1 L_h46b
s_nop 2
s_cbranch_vccz L_h46b""")
flagloads(0x8000)
flagcheck()
E(f"""s_branch L_h46a
L_h46b:
s_cmp_lg_u32 s{sLAY}, 0
s_cbranch_scc1 L_hookret47""")
qseg()
for i in range(NPRE): E(wfrag_load(v(vWP+4*i, 4), 10+i, sT))
E(f"""s_branch L_hookret47
L_codeend:
.section .rodata,"a"
.p2align 6
.amdhsa_kernel {NAME}_kernel
.amdhsa_next_free_vgpr 512
.amdhsa_next_free_sgpr 102
.amdhsa_accum_offset 256
.amdhsa_group_segment_fixed_size 0
.amdhsa_kernarg_size 104
.amdhsa_user_sgpr_count 2
.amdhsa_user_sgpr_kernarg_segment_ptr 1
.amdhsa_system_sgpr_workgroup_id_x 1
.end_amdhsa_kernel""")
open(sys.argv[1], "w").write(E.text())
open(sys.argv[1] + ".ts", "w").write("\n".join(TSN))
```

```python
import sys, math, os
from asmlib import *
NAME = "interleave_layers__grouped_kv_mqa__moe_arch_mod__prompt"
STOP = int(sys.argv[2]) if len(sys.argv) > 2 else 99
PROF = len(sys.argv) > 3
E = Asm()
WS_FL = 0x1000; WS_KV = 0x40000; WS_WQF = 0x100000; WS_WOF = 0x1C8000; WS_SM = 0x290000; WS_OB = 0x300000; WS_VB = 0x580000
K2OFF = 0x10000; VOFF = 0x18000
SM_H = 0x1000; SM_XS = 0x3000; SM_LK1 = 0x4000; SM_LK2 = 0x4100; SM_LV = 0x4200; SM_QS = 0x5000; SM_CAND = 0x8000; SM_L = 0x30000
OOB = 0x40000000
PREG = 36864; CONST = 6400; RING = 12800; WOPREP = 33280; CSO = 34304
OST = 24576
BB = 0; P4 = 40960; FP = 61440; FFNW = 98304
QAREA = 147456; P6 = 147456; STAT1 = 159744; STAT2 = 160768; VT = 161792; TOP = 163328
LDS_BYTES = 163840
sW, sRB, sCB, sTAG, sLAY = 3, 4, 5, 6, 7
WS, XO, WG, T2 = 8, 12, 16, 20
sMODE, sWL, sI1, sI2, sK1, sK2 = 24, 25, 26, 27, 28, 29
sSP = 30
sEX = 32
sSEG = 34
sKVO = 40
sT = 52
sKV, sSM, sFLK, sLOC, sF = 64, 65, 66, 39, 67
sROLE = 24; sSQ = 29; FPC = 139264; vPI = 251; vOT = 250
sDS, sDT, sD5 = 25, 28, 68
sM1, sM2, sS1, sS2, sO1, sO2, sR1, sR2 = 78, 79, 90, 91, 100, 101, 0, 1
pX, pWQ, pWK, pWV, pWO, pWR, pG, pU, pD, pOUT, pDBG, pWS = 68, 70, 72, 74, 76, 80, 82, 84, 86, 88, 90, 92
vL, vJ, vH, vL16 = 1, 2, 3, 4
vAL, vMU, vRS = 11, 12, 13
vOST, vVO = 14, 15
vS = 16; vP = 80; vQ = 96; vXR = 116; vQa = 126; vQb = 127
G = 16; vF6 = 128; vF4 = 168; vCQ = 224; vWP = 208; vC6 = 244; vCR = 248; vKEY = 249
vR6 = 112
vA1, vA2 = 254, 255
NPRE = 4
sQS = 44
aK1 = 0; aK2 = 64; aV = 96; aO = 224
CSC = math.log2(math.e) / math.sqrt(20.0)
L2E = math.log2(math.e)
TSN = []
def TS(name, ctx=False):
    if not PROF: return
    i = len(TSN); TSN.append(name)
    E(f"""s_memrealtime s[94:95]
    s_memtime s[98:99]
    {f's_cmp_eq_u32 s{sF}, {WS_SM}' + chr(10) + 's_cselect_b32 s96, 0, 32' if ctx else f's_lshl_b32 s96, s{sLAY}, 5'}
    s_add_u32 s96, s96, {i}
    s_mov_b32 s97, m0
    s_mov_b32 m0, s96
    s_waitcnt lgkmcnt(0)
    v_writelane_b32 v253, s94, m0
    v_writelane_b32 v252, s98, m0
    s_mov_b32 m0, s97""")
def stop(n):
    if STOP == n: E("s_waitcnt vmcnt(0) lgkmcnt(0)\ns_branch L_dump")
def srd(d, p, size):
    E(f"s_mov_b32 s{d}, s{p}\ns_mov_b32 s{d+1}, s{p+1}\ns_mov_b32 s{d+2}, {size}\ns_mov_b32 s{d+3}, 0x20000")
ws = f"s[{WS}:{WS+3}]"
def signal(soff):
    E(f"""v_mov_b32 v5, s{sTAG}
    v_mov_b32 v6, 0
    s_mov_b64 exec, 1
    buffer_store_dword v5, v6, {ws}, s{soff} offen sc1
    s_mov_b64 exec, -1""")
def spin(body, bad_cmp):
    lp = E.label("Lsp"); ld = E.label("Lsd")
    E(f"s_mov_b32 s{sT+11}, 0x80000\n{lp}:")
    body()
    E(f"""{bad_cmp}
    s_sub_u32 s{sT+11}, s{sT+11}, 1
    s_cbranch_scc1 {ld}
    s_nop 2
    s_cbranch_vccnz {lp}
    {ld}:""")
def maxtree(regs, t):
    regs = list(regs)
    E(f"v_max3_u32 v{t}, v{regs[0]}, v{regs[1]}, v{regs[2]}")
    i = 3
    while i + 1 < len(regs):
        E(f"v_max3_u32 v{t}, v{t}, v{regs[i]}, v{regs[i+1]}"); i += 2
    if i < len(regs): E(f"v_max_u32 v{t}, v{t}, v{regs[i]}")
def maxtree2(regs, t, t2):
    h = len(regs)//2
    a_, b_ = list(regs[:h]), list(regs[h:])
    E(f"v_max3_u32 v{t}, v{a_[0]}, v{a_[1]}, v{a_[2]}\nv_max3_u32 v{t2}, v{b_[0]}, v{b_[1]}, v{b_[2]}")
    i = 3
    while i < h:
        if i + 1 < h:
            E(f"v_max3_u32 v{t}, v{t}, v{a_[i]}, v{a_[i+1]}\nv_max3_u32 v{t2}, v{t2}, v{b_[i]}, v{b_[i+1]}")
        else:
            E(f"v_max3_u32 v{t}, v{t}, v{a_[i]}, v{b_[i]}")
        i += 2
    E(f"v_max_u32 v{t}, v{t}, v{t2}")
va3 = lambda i: [vL16, vA1, vA2][i // 4]
def gather10(soff):
    E(f"s_mul_i32 s{sT+2}, s{sW}, 10240\nv_add_u32 v8, s{sT+2}, v{vL16}")
    def body():
        for i in range(10):
            if i % 4 == 0: E(f"s_add_u32 m0, s{sT+2}, {i*1024}\ns_nop 0")
            E(f"buffer_load_dwordx4 v{va3(i)}, {ws}, s{soff} offen offset:{(i%4)*1024} sc1 lds")
        E("s_waitcnt vmcnt(0)")
        for i in range(10): E(f"ds_read_b128 {v(G+4*i,4)}, v8 offset:{i*1024}")
        E("s_waitcnt lgkmcnt(5)")
        maxtree(range(G, G+20), 5)
        E("s_waitcnt lgkmcnt(0)")
        maxtree(range(G+20, G+40), 6)
        E("v_max_u32 v5, v5, v6")
    spin(body, "v_cmp_eq_u32 vcc, -1, v5")
def dual(stores):
    l1 = E.label("Lrm"); l2 = E.label("Lrd")
    E(f"s_cmp_eq_u32 s{sLOC}, 0\ns_cbranch_scc1 {l1}")
    stores("")
    E(f"s_branch {l2}\n{l1}:")
    stores("sc1")
    E(f"{l2}:")
def pubgather(stores, soff):
    dual(stores)
    gather10(soff)
def wavemax(src_, dst, rows=4):
    E(f"v_mov_b32 v10, v{src_}\ns_nop 1")
    for r in (8, 4, 2, 1):
        E(f"v_max_u32_dpp v10, v10, v10 row_ror:{r} row_mask:0xf bank_mask:0xf\ns_nop 1")
    for i in range(rows): E(f"v_readlane_b32 s{sT+4+i}, v10, {16*i}")
    if rows == 4:
        E(f"s_nop 1\ns_max_u32 s{sT+4}, s{sT+4}, s{sT+5}\ns_max_u32 s{sT+6}, s{sT+6}, s{sT+7}\ns_max_u32 s{dst}, s{sT+4}, s{sT+6}")
    else:
        E(f"s_nop 3\ns_max_u32 s{dst}, s{sT+4}, s{sT+5}")
def center(G=G, sc=56, mu=vMU):
    E(f"s_mov_b32 s{sT}, 0x00003f80\ns_mov_b32 s{sT+1}, 0x3f800000\nv_sub_f32 v7, 0, v{mu}")
    for b in range(0, 40, 8):
        for i in range(8):
            E(f"v_dot2_f32_bf16 v{sc+2*i}, v{G+b+i}, s{sT}, v7\nv_dot2_f32_bf16 v{sc+1+2*i}, v{G+b+i}, s{sT+1}, v7")
        for i in range(8):
            E(f"v_cvt_pk_bf16_f32 v{G+b+i}, v{sc+2*i}, v{sc+1+2*i}")
def halfsum(r, t):
    E(f"v_mov_b32 v{t}, v{r}\ns_nop 1\nv_permlane32_swap_b32 v{r}, v{t}\ns_nop 0\nv_add_f32 v{r}, v{r}, v{t}")
def sum8(d, x):
    E(f"""v_add_f32 v{x}, v{x}, v{x+1}
    v_add_f32 v{x+2}, v{x+2}, v{x+3}
    v_add_f32 v{x+4}, v{x+4}, v{x+5}
    v_add_f32 v{x+6}, v{x+6}, v{x+7}
    v_add_f32 v{x}, v{x}, v{x+2}
    v_add_f32 v{x+4}, v{x+4}, v{x+6}
    v_add_f32 v{d}, v{x}, v{x+4}""")
def sum4q(d, x, n):
    for i in range(0, n, 2): E(f"v_pk_add_f32 {v(x+i,2)}, {v(x+i,2)}, {v(x+n+i,2)}")
    for i in range(0, n, 2): E(f"v_pk_add_f32 {v(x+2*n+i,2)}, {v(x+2*n+i,2)}, {v(x+3*n+i,2)}")
    for i in range(0, n, 2): E(f"v_pk_add_f32 {v(d+i,2)}, {v(x+i,2)}, {v(x+2*n+i,2)}")
MF = "v_mfma_f32_32x32x16_bf16"

E(f"""; @launch grid=(256,1,1) block=(256,1,1) lds={LDS_BYTES}
.amdgcn_target "amdgcn-amd-amdhsa--gfx950"
.text
.globl {NAME}_kernel
.p2align 8
.type {NAME}_kernel,@function
{NAME}_kernel:
s_cmp_ge_u32 s2, 256
s_cbranch_scc1 L_exit2
s_load_dwordx16 s[68:83], s[0:1], 0
s_load_dwordx8 s[84:91], s[0:1], 64
s_load_dwordx2 s[92:93], s[0:1], 96
""")
if os.environ.get("CPF"):
    E(f"""s_getpc_b64 s[{sT}:{sT+1}]
L_pc0:
s_lshr_b32 s{sT+2}, s2, 3
s_and_b32 s{sT+2}, s{sT+2}, 3
s_lshl_b32 s{sT+2}, s{sT+2}, 14
v_lshl_add_u32 v6, v0, 6, s{sT+2}
v_min_u32 v6, L_codeend-L_pc0-4, v6
v_mov_b32 v7, s{sT+1}
v_add_co_u32 v6, vcc, s{sT}, v6
s_nop 1
v_addc_co_u32 v7, vcc, 0, v7, vcc
global_load_dword v249, v[6:7], off""")
E(f"""v_and_b32 v{vL}, 63, v0
v_lshrrev_b32 v5, 6, v0
v_and_b32 v{vJ}, 31, v0
v_bfe_u32 v{vH}, v0, 5, 1
v_readfirstlane_b32 s{sW}, v5
v_lshlrev_b32 v{vL16}, 4, v{vL}
s_and_b32 s{sT}, s2, 7
s_lshr_b32 s{sT+1}, s2, 5
s_lshl_b32 s{sT+1}, s{sT+1}, 3
s_or_b32 s{sRB}, s{sT}, s{sT+1}
s_bfe_u32 s{sCB}, s2, 0x20003
s_mul_i32 s{sWL}, s{sW}, {PREG}
s_mov_b32 s{sLAY}, 0
s_mov_b32 s{sROLE}, 0
v_add_u32 v{vA1}, 4096, v{vL16}
v_add_u32 v{vA2}, 8192, v{vL16}
s_mov_b32 s{sT+6}, 52429
s_lshl_b32 s{sT+7}, s{sW}, 2
s_mul_i32 s{sT+5}, s{sW}, 204800
s_mul_i32 s{sT+4}, s{sCB}, 320
s_add_u32 s{sT+5}, s{sT+5}, s{sT+4}""")
vWo = 208; vXo = 213; vTa = 226; XI = RING + 2*5120
for i in range(5):
    E(f"""v_add_u32 v8, {64*i}, v{vL}
    v_mul_lo_u32 v9, v8, s{sT+6}
    v_lshrrev_b32 v10, 22, v9
    v_lshrrev_b32 v9, 20, v9
    v_mul_u32_u24 v9, 960, v9
    v_lshl_add_u32 v9, v8, 4, v9
    v_subrev_u32 v9, {1024*i if i < 4 else 0}, v9
    v_add_u32 v{vWo+i}, s{sT+5}, v9
    v_or_b32 v10, s{sT+7}, v10
    v_xor_b32 v9, v8, v10
    v_lshlrev_b32 v9, 4, v9
    v_subrev_u32 v{vXo+i}, {1024*i if i < 4 else 0}, v9""")
E(f"""s_mul_i32 s{sT}, s{sRB}, 40960
s_mul_i32 s{sT+1}, s{sW}, 10240
s_add_u32 s{sT+2}, s{sT}, s{sT+1}
s_add_u32 s{sT+3}, s{sT+2}, 5120
s_mul_i32 s{sT+1}, s{sW}, 6400
v_add_u32 v7, s{sT+1}, v{vL16}
s_mul_i32 s{sT+1}, s{sW}, 320
s_add_u32 m0, s{sWL}, {XI}
s_waitcnt lgkmcnt(0)
s_load_dword s{sTAG}, s[{pWS}:{pWS+1}], 0""")
TS("start")
VM = []
def vmw(tag):
    last = max(i for i, t in enumerate(VM) if t == tag)
    E(f"s_waitcnt vmcnt({len(VM)-1-last})")
srd(XO, pX, 2621440)
for hf in range(2):
    for i in range(4):
        E(f"buffer_load_dwordx4 v{vXo+i}, s[{XO}:{XO+3}], s{sT+2+hf} offen offset:{1024*i} lds")
    E("s_add_u32 m0, m0, 4096\ns_nop 0")
    E(f"buffer_load_dwordx4 v{vXo+4}, s[{XO}:{XO+3}], s{sT+2+hf} offen lds")
    E("s_add_u32 m0, m0, 1024" if hf == 0 else f"s_mov_b32 m0, s{sWL}")
    if hf == 0: E("s_nop 0")
VM += ["x"]*10
srd(WG, pWQ, 819200)
E(f"""s_lshr_b32 s{sT+5}, s2, 3
s_lshl_b32 s{sT+5}, s{sT+5}, 2
s_add_u32 s{sT+5}, s{sT+5}, s{sW}
s_mul_i32 s{sT+5}, s{sT+5}, 6400""")
for i in range(7):
    E(f"buffer_load_dwordx4 {a(240+4*(i%4),4)}, v{va3(i)}, s[{WG}:{WG+3}], s{sT+5} offen offset:{(i%4)*1024}")
E(f"""s_lshr_b32 s{sT+4}, s2, 3
s_cmp_lt_u32 s{sT+4}, 16
s_cselect_b32 s{T2}, s{pWK}, s{pWV}
s_cselect_b32 s{T2+1}, s{pWK+1}, s{pWV+1}
s_mov_b32 s{T2+2}, 25600
s_mov_b32 s{T2+3}, 0x20000
s_and_b32 s{sT+4}, s{sT+4}, 15
s_lshl_b32 s{sT+4}, s{sT+4}, 2
s_add_u32 s{sT+4}, s{sT+4}, s{sW}
s_mul_i32 s{sT+4}, s{sT+4}, 400
s_mov_b64 exec, 0x1ffffff
buffer_load_dwordx4 {a(252,4)}, v{vL16}, s[{T2}:{T2+3}], s{sT+4} offen
s_mov_b64 exec, -1""")
VM += ["pf"]*8
def wloads(slot, k):
    E(f"s_add_u32 m0, s{sWL}, {RING + slot*5120}\ns_mov_b32 s{sT+7}, {k*20480}")
    for i in range(4):
        E(f"buffer_load_dwordx4 v{vWo+i}, s[{WG}:{WG+3}], s{sT+7} offen offset:{1024*i} lds")
    E("s_add_u32 m0, m0, 4096\ns_nop 0")
    E(f"buffer_load_dwordx4 v{vWo+4}, s[{WG}:{WG+3}], s{sT+7} offen lds")
    VM.extend([f"W{k}"]*5)
sG, sTT, sS = sSEG, sSEG+1, sSEG+2
def xres_loads():
    E(f"""s_mul_i32 s{sT}, s{sRB}, 40960
    v_mul_u32_u24 v5, 1280, v{vJ}
    v_lshl_add_u32 v6, v{vH}, 3, v5
    v_lshl_add_u32 v5, v{vH}, 4, v5
    s_mul_i32 s{sT+4}, s{sCB}, 320
    s_mul_i32 s{sT+5}, s{sW}, 80
    s_add_u32 s{sT+4}, s{sT+4}, s{sT+5}
    s_add_u32 s{sT+4}, s{sT+4}, s{sT}
    buffer_load_dwordx4 {v(vXR,4)}, v5, s[{XO}:{XO+3}], s{sT+4} offen
    buffer_load_dwordx4 {v(vXR+4,4)}, v5, s[{XO}:{XO+3}], s{sT+4} offen offset:32
    buffer_load_dwordx2 {v(vXR+8,2)}, v6, s[{XO}:{XO+3}], s{sT+4} offen offset:64""")
def woprep_load():
    E(f"""s_lshl_b32 s{sG}, s2, 2
    s_add_u32 s{sG}, s{sG}, s{sW}
    s_min_u32 s{sT}, s{sG}, 799
    s_mul_i32 s{sT+1}, s{sT}, 52429
    s_lshr_b32 s{sT+1}, s{sT+1}, 21
    s_mul_i32 s{sT+2}, s{sT+1}, 40
    s_sub_u32 s{sS}, s{sT}, s{sT+2}
    s_mul_i32 s{sT+2}, s{sT+1}, 52429
    s_lshr_b32 s{sT+2}, s{sT+2}, 18
    s_mul_i32 s{sT+3}, s{sT+2}, 5
    s_sub_u32 s{sTT}, s{sT+1}, s{sT+3}""")
    for hh in range(2):
        E(f"""s_lshl_b32 s{sT+8}, s{sS}, 1
        s_add_u32 s{sT+8}, s{sT+8}, {hh}
        s_mul_i32 s{sT+9}, s{sT+8}, 52429
        s_lshr_b32 s{sT+9}, s{sT+9}, 18
        s_mul_i32 s{sT+10}, s{sT+9}, 5
        s_sub_u32 s{sT+8}, s{sT+8}, s{sT+10}
        s_lshl_b32 s{sT+10}, s{sT+8}, 3
        s_mov_b32 s{sEX}, 0x18140400
        s_mov_b32 s{sEX+1}, 0x10
        s_lshr_b64 s[{sEX}:{sEX+1}], s[{sEX}:{sEX+1}], s{sT+10}
        s_and_b32 s{sEX}, s{sEX}, 0xff
        s_mul_i32 s{sT+9}, s{sT+9}, 40
        s_add_u32 s{sT+4+2*hh}, s{sT+9}, s{sEX}
        s_cmp_eq_u32 s{sT+8}, 4
        s_cselect_b32 s{sT+5+2*hh}, 20, 8""")
    E(f"""v_cmp_eq_u32 vcc, 1, v{vH}
    v_mov_b32 v8, s{sT+4}
    v_mov_b32 v9, s{sT+6}
    v_cndmask_b32 v8, v8, v9, vcc
    v_mov_b32 v9, s{sT+5}
    v_mov_b32 v10, s{sT+7}
    v_cndmask_b32 v9, v9, v10, vcc
    v_bfe_u32 v10, v{vL}, 4, 1
    v_mad_u32_u24 v8, v9, v10, v8
    v_bfe_u32 v10, v{vL}, 2, 2
    v_add_u32 v8, v8, v10
    v_mul_u32_u24 v8, 1280, v8
    s_cmp_eq_u32 s{sTT}, 4
    s_cselect_b32 s{sT+4}, 80, 16
    s_mul_i32 s{sT+5}, s{sTT}, 80
    s_cselect_b32 s{sT+5}, 64, s{sT+5}
    s_mul_i32 s{sT+6}, s{sT+2}, 320
    s_add_u32 s{sT+5}, s{sT+5}, s{sT+6}
    v_and_b32 v10, 3, v{vL}
    v_mad_u32_u24 v8, v10, s{sT+4}, v8
    v_add_u32 v230, s{sT+5}, v8""")
def woprep_issue():
    srd(T2, pWO, 819200)
    E(f"s_add_u32 m0, s{sWL}, {WOPREP}\ns_nop 0\nbuffer_load_dwordx4 v230, s[{T2}:{T2+3}], 0 offen lds")

srd(WS, pWS, 0x10000000)
E(f"""s_mov_b32 s{sKV}, {WS_KV}
s_mov_b32 s{sSM}, {WS_SM}
s_mov_b32 s{sFLK}, {WS_FL}
v_mul_u32_u24 v{vVO}, 336, v{vH}
v_lshl_add_u32 v{vVO}, v{vJ}, 4, v{vVO}
v_mov_b32 v5, {OOB}
v_cmp_lt_u32 vcc, 20, v{vJ}
s_mul_i32 s{sT}, s{sW}, {OST}
v_add_u32 v{vOST}, s{sT}, v{vL16}
v_cndmask_b32 v{vVO}, v{vVO}, v5, vcc
v_bfe_u32 v5, v{vL}, 3, 2
v_and_b32 v6, 7, v{vL}
v_lshlrev_b32 v7, 11, v5
v_lshl_add_u32 v7, v{vH}, 9, v7
v_lshl_add_u32 v7, v6, 4, v7
v_add_u32 v{vQa}, {QAREA}, v7
v_lshlrev_b32 v7, 9, v5
v_lshl_add_u32 v7, v{vH}, 8, v7
v_lshl_add_u32 v7, v6, 3, v7
v_add_u32 v{vQb}, {QAREA+8192}, v7""")
E(f"""v_bfe_u32 v5, v{vL}, 2, 2
v_lshl_add_u32 v5, v{vH}, 3, v5
v_bfe_u32 v7, v{vL}, 4, 1
v_and_b32 v8, 3, v{vL}
v_lshl_add_u32 v6, v7, 2, v8
v_mul_u32_u24 v9, 320, v5
v_add_u32 v9, s{sWL}, v9
v_add_u32 v9, {RING}, v9
v_add_u32 v10, v6, v7
v_lshl_add_u32 v{vTa}, v10, 3, v9
v_lshrrev_b32 v10, 1, v6
v_mul_u32_u24 v10, 80, v10
v_and_b32 v8, 1, v6
v_mad_u32_u24 v10, v8, 40, v10
v_add3_u32 v{vTa+1}, v10, v9, 32
v_mul_u32_u24 v9, 40, v5
v_min_u32 v10, 4, v6
v_lshlrev_b32 v10, 3, v10
v_mov_b32 v8, {CONST}
v_cmp_lt_u32 vcc, 5, v6
v_add_u32 v9, s{sWL}, v9
v_mul_u32_u24 v7, 40, v{vL}
v_cndmask_b32 v10, v10, v8, vcc
v_add_u32 v{vTa+2}, v9, v10
s_add_u32 s{sT}, s{sWL}, {CONST}
v_add_u32 v7, s{sT}, v7
s_add_u32 s{sT}, s{sWL}, {CSO}
v_lshl_add_u32 v{vTa+3}, v{vJ}, 2, s{sT}
s_getreg_b32 s{sT+1}, hwreg(HW_REG_XCC_ID, 0, 4)
s_lshl_b32 s{sT+2}, s{sRB}, 2
s_add_u32 s{sT+2}, s{sT+2}, s{sCB}
s_lshl_b32 s{sT+2}, s{sT+2}, 6
s_add_u32 s{sT+2}, s{sT+2}, {WS_FL+0x10000}
v_mov_b32 v8, 0x3f80
v_mov_b32 v101, 0
v_mov_b32 v103, 0
v_mov_b32 v105, 0
s_mul_i32 s{sT+3}, s{sW}, 20
v_lshrrev_b32 v5, 3, v{vJ}
v_mul_u32_u24 v6, {PREG}, v5
v_and_b32 v9, 7, v{vJ}
v_mul_u32_u24 v9, 1280, v9
v_add3_u32 v6, v6, v9, s{sT+3}
v_and_b32 v9, 3, v{vJ}
v_lshl_or_b32 v5, v5, 2, v9
v_subrev_u32 v6, s{sT+3}, v6
v_add_u32 v6, {XI}, v6
v_add_u32 v9, s{sT+3}, v{vH}""")
for k in range(10):
    E(f"v_add_u32 v10, {2*k}, v9\nv_xor_b32 v10, v10, v5\nv_lshl_add_u32 v{56+k}, v10, 4, v6")
E(f"""s_waitcnt lgkmcnt(0)
s_add_u32 s{sTAG}, s{sTAG}, 1
s_lshl_b32 s{sT}, s{sTAG}, 4
s_or_b32 s{sLOC}, s{sT}, s{sT+1}
v_mov_b32 v5, s{sLOC}
v_mov_b32 v6, 0
s_mov_b64 exec, 1
buffer_store_dword v5, v6, {ws}, s{sT+2} offen sc1
s_mov_b64 exec, -1
v_mov_b32 v66, v7
v_mov_b32 v67, v8""")
VM.append("cl")
woprep_load()
E(f"v_subrev_u32 v5, s{sWL}, v{vTa}\ns_mul_i32 s{sT}, s{sW}, 80\nv_add_u32 v5, s{sT}, v5")
for g in range(4):
    E(f"""s_add_u32 s{sT}, s{sW}, {g}
    s_and_b32 s{sT}, s{sT}, 3
    s_mul_i32 s{sT}, s{sT}, {PREG}
    v_add_u32 v{218+g}, s{sT}, v5
    v_add_u32 v{222+g}, s{sT}, v{vL16}""")
if os.environ.get("KTS"): TS("calc_done")
l6a = E.label("L6a")
E(f"s_mul_i32 s{sT+1}, s{sW}, 6400\nv_add_u32 v7, s{sT+1}, v{vL16}\ns_mov_b32 m0, s{sWL}")
E(f"""s_cmp_ge_u32 s{sCB}, 2
s_cbranch_scc1 {l6a}
s_cmp_eq_u32 s{sCB}, 0
s_cselect_b32 s{T2}, s{pWK}, s{pWV}
s_cselect_b32 s{T2+1}, s{pWK+1}, s{pWV+1}
s_mov_b32 s{T2+2}, 25600
s_mov_b32 s{T2+3}, 0x20000
s_mov_b32 s{sT+4}, 4096""")
for i in range(4):
    E(f"buffer_load_dwordx4 v7, s[{T2}:{T2+3}], 0 offen offset:{i*1024} lds")
E("s_add_u32 m0, m0, 4096\ns_nop 0")
for i in range(2):
    E(f"buffer_load_dwordx4 v7, s[{T2}:{T2+3}], s{sT+4} offen offset:{i*1024} lds")
E(f"""s_mov_b64 exec, 0xffff
buffer_load_dwordx4 v7, s[{T2}:{T2+3}], s{sT+4} offen offset:2048 lds
s_mov_b64 exec, -1
{l6a}:""")
srd(T2, pWR, 1280)
E(f"v_lshlrev_b32 v7, 1, v{vL}\ns_mul_i32 s{sT+1}, s{sW}, 320")
for i in range(3):
    E(f"buffer_load_ushort v{100+2*i}, v7, s[{T2}:{T2+3}], s{sT+1} offen offset:{128*i}")
VM += ["wr"]*3
if os.environ.get("KTS"): TS("wr_issued")
vmw("x")
E("s_barrier")
TS("x_arrived")
for k in range(10): E(f"ds_read_b128 {v(G+4*k,4)}, v{56+k}")
wloads(0, 0)
vmw("wr")
E(f"""v_lshl_or_b32 v100, v100, 16, v67
v_lshl_or_b32 v102, v102, 16, v67
v_lshl_or_b32 v104, v104, 16, v67
ds_write_b64 v66, v[100:101]
ds_write_b64 v66, v[102:103] offset:2560
s_mov_b64 exec, 0xffffffff
ds_write_b64 v66, v[104:105] offset:5120
s_mov_b64 exec, -1
s_waitcnt lgkmcnt(0)""")
for k in range(10):
    for u in range(2):
        E(f"ds_read_b64_tr_b16 {v(vF6+4*k+2*u,2)}, v{vTa+2} offset:{k*640+u*160}")
E(f"""s_mov_b32 s{sT}, 0x3f803f80
v_mov_b32 v5, 0
v_mov_b32 v6, 0
s_waitcnt lgkmcnt(0)""")
for i in range(40):
    E(f"v_dot2_f32_bf16 v{5+i%2}, v{vF6+i}, s{sT}, v{5+i%2}")
wloads(1, 1)
if os.environ.get("KTS"): TS("c6")
E("s_nop 2\nv_add_f32 v5, v5, v6")
halfsum(5, 6)
E(f"ds_write_b32 v{vTa+3}, v5")
def lnkv(p1, after_bar=None, before_bar=None, perk=None):
    A6 = 64
    E("v_mov_b32 v6, 0\nv_mov_b32 v7, 0")
    for k in range(10):
        E(f"{MF} {v(A6,16)}, {v(vF6+4*k,4)}, {v(G+4*k,4)}, {'0' if k == 0 else v(A6,16)}")
        for i in range(4*k, 4*k+4):
            E(f"v_dot2_f32_bf16 v{6+i%2}, v{G+i}, v{G+i}, v{6+i%2}")
        if perk: perk()
    E(f"""s_lshl_b32 s{sT}, s{sW}, 4
    s_add_u32 s{sT}, s{sT}, {STAT1}
    v_lshlrev_b32 v8, 6, v{vJ}
    v_add_f32 v7, v6, v7
    v_add_u32 v9, s{sT}, v8
    v_add_u32 v8, {STAT1}, v8
    v_mov_b32 v6, v7
    s_mul_i32 s{sT}, s{sW}, 3072
    s_add_u32 s{sT}, s{sT}, {P6}
    v_permlane32_swap_b32 v6, v7
    v_add_u32 v10, s{sT}, v{vL16}
    s_min_u32 s{sT}, s{sW}, 2
    s_lshl_b32 s{sT+1}, s{sT}, 10
    s_add_u32 s{sT+1}, s{sT+1}, {P6}
    v_add_f32 v{A6+14}, v6, v7""")
    for q in range(3): E(f"ds_write_b128 v10, {v(A6+4*q,4)} offset:{q*1024}")
    E(f"""s_mov_b64 exec, 0xffffffff
    ds_write_b128 v9, {v(A6+12,4)}
    s_mov_b64 exec, -1
    v_add_u32 v9, s{sT+1}, v{vL16}""")
    if before_bar: before_bar()
    E("s_waitcnt lgkmcnt(0)\ns_barrier")
    for i in range(4): E(f"ds_read_b128 {v(80+4*i,4)}, v8 offset:{16*i}")
    for wr in range(4): E(f"ds_read_b128 {v(64+4*wr,4)}, v9 offset:{wr*3072}")
    if after_bar: after_bar()
    if p1: E(f"""s_min_u32 s{sT}, s{sW}, 2
    s_lshl_b32 s{sT}, s{sT}, 5
    s_add_u32 s{sT}, s{sT}, {CSO}
    v_lshl_add_u32 v5, v{vH}, 4, s{sT}
    v_add_u32 v6, {2*PREG}, v5
    v_mov_b32 v7, {CSO+100}
    v_mov_b32 v10, {CSO+100+2*PREG}""")
    if p1:
        for wr in range(4): E(f"ds_read_b128 {v(100+4*wr,4)}, v{5+wr//2} offset:{(wr%2)*PREG}")
        for wr in range(4): E(f"ds_read_b32 v{56+wr}, v{7 if wr < 2 else 10} offset:{(wr%2)*PREG}")
    E(f"s_waitcnt lgkmcnt({12 if p1 else 4})")
    sum4q(80, 80, 4)
    E(f"""v_mul_f32 v{vMU}, {f2u(1.0/640)}, v80
    v_mul_f32 v5, {f2u(1.0/640)}, v82
    v_fma_f32 v5, -v{vMU}, v{vMU}, v5
    v_max_f32 v5, 0, v5
    v_add_f32 v6, {f2u(1e-5)}, v5
    v_rsq_f32 v{vRS}, v6
    s_waitcnt lgkmcnt(0)""")
    if p1: sum4q(vC6, 100, 4)
    sum4q(vR6, 64, 4)
    if p1:
        E(f"v_add_f32 v56, v56, v57\nv_add_f32 v58, v58, v59\nv_add_f32 v{vCR}, v56, v58\nv_mov_b32 v{vAL}, v{vRS}")
        for i in range(4): E(f"v_fma_f32 v{vR6+i}, -v{vMU}, v{vC6+i}, v{vR6+i}")
        return
    E(f"""v_add_f32 v6, 1.0, v{vRS}
    v_mul_f32 v7, v6, v6
    v_mov_b32 v8, {f2u(1e-5)}
    v_fmac_f32 v8, v5, v7
    v_rsq_f32 v8, v8""")
    for i in range(4): E(f"v_fma_f32 v{vR6+i}, -v{vMU}, v{vC6+i}, v{vR6+i}")
    E(f"""v_mul_f32 v{vAL}, v6, v8
""")

def kvpost(before_bar=None):
    lk1 = E.label("Lk"); lkv = E.label("Lkv"); lk2 = E.label("Lk"); lk3 = E.label("Lk"); lk4 = E.label("Lk")
    for i in range(4): E(f"v_mul_f32 v{56+i}, v{vR6+i}, v{vAL}")
    E(f"""s_cmp_ge_u32 s{sCB}, 2
    s_cbranch_scc1 {lk1}
    s_cmp_eq_u32 s{sW}, 3
    s_cbranch_scc1 {lk1}
    s_lshl_b32 s{sT}, s{sW}, 9
    s_add_u32 s{sT}, s{sT}, {VT}
    s_cmp_eq_u32 s{sCB}, 1
    s_cbranch_scc1 {lkv}
    v_cvt_pk_bf16_f32 v60, v56, v57
    v_cvt_pk_bf16_f32 v61, v58, v59
    v_lshl_add_u32 v5, v{vL}, 3, s{sT}
    ds_write_b64 v5, v[60:61]
    s_branch {lk1}
    {lkv}:
    s_cmp_lg_u32 s{sW}, 2
    s_cbranch_scc1 {lk2}
    v_cmp_eq_u32 vcc, 1, v{vH}
    s_nop 1
    v_cndmask_b32 v56, v56, 1.0, vcc
    {lk2}:
    v_cvt_pk_bf16_f32 v60, v56, v57
    v_cvt_pk_bf16_f32 v61, v58, v59
    v_and_b32 v5, 0x13, v{vJ}
    v_bfe_u32 v6, v{vJ}, 2, 1
    v_lshl_add_u32 v5, v6, 3, v5
    v_bfe_u32 v6, v{vJ}, 3, 1
    v_lshl_add_u32 v5, v6, 2, v5
    v_lshlrev_b32 v5, 1, v5
    v_lshl_add_u32 v5, v{vH}, 8, v5
    v_add_u32 v5, s{sT}, v5
    ds_write_b16 v5, v60
    ds_write_b16_d16_hi v5, v60 offset:64
    ds_write_b16 v5, v61 offset:128
    ds_write_b16_d16_hi v5, v61 offset:192
    {lk1}:""")
    if before_bar: before_bar()
    E(f"""s_waitcnt lgkmcnt(0)
    s_barrier
    s_cmp_ge_u32 s{sCB}, 2
    s_cbranch_scc1 {lk3}
    s_cmp_lg_u32 s{sW}, 0
    s_cbranch_scc1 {lk3}
    s_cmp_eq_u32 s{sCB}, 1
    s_cbranch_scc1 {lk4}
    v_lshlrev_b32 v5, 3, v{vL}
    v_add_u32 v5, {VT}, v5
    ds_read_b64 v[56:57], v5
    ds_read_b64 v[58:59], v5 offset:512
    ds_read_b64 v[60:61], v5 offset:1024
    s_lshl_b32 s{sT}, s{sRB}, 10
    s_add_u32 s{sT}, s{sT}, s{sKV}
    s_lshr_b32 s{sT+1}, s{sRB}, 1
    s_lshl_b32 s{sT+1}, s{sT+1}, 10
    s_and_b32 s{sT+2}, s{sRB}, 1
    s_lshl_b32 s{sT+2}, s{sT+2}, 3
    s_add_u32 s{sT+1}, s{sT+1}, s{sT+2}
    s_add_u32 s{sT+1}, s{sT+1}, s{sKV}
    s_add_u32 s{sT+1}, s{sT+1}, {K2OFF}
    s_waitcnt lgkmcnt(0)
    buffer_store_dwordx4 v[56:59], v{vL16}, {ws}, s{sT} offen sc1
    buffer_store_dwordx2 v[60:61], v{vL16}, {ws}, s{sT+1} offen sc1
    s_branch {lk3}
    {lk4}:
    v_min_u32 v5, 23, v{vJ}
    v_lshlrev_b32 v5, 6, v5
    v_lshl_add_u32 v5, v{vH}, 4, v5
    v_add_u32 v5, {VT}, v5
    ds_read_b128 v[56:59], v5
    ds_read_b128 v[60:63], v5 offset:32
    s_mul_i32 s{sT}, s{sRB}, 1344
    s_add_u32 s{sT}, s{sT}, s{sKV}
    s_add_u32 s{sT}, s{sT}, {VOFF}
    s_waitcnt lgkmcnt(0)
    buffer_store_dwordx4 v[56:59], v{vVO}, {ws}, s{sT} offen sc1
    buffer_store_dwordx4 v[60:63], v{vVO}, {ws}, s{sT} offen offset:672 sc1
    {lk3}:""")

def kvflag(n, sT=sT):
    l = E.label("Lkf")
    E(f"""s_cmp_lg_u32 s{sW}, 0
    s_cbranch_scc1 {l}
    s_lshl_b32 s{sT}, s2, 6
    s_add_u32 s{sT}, s{sT}, s{sFLK}
    s_waitcnt vmcnt({n})""")
    signal(sT)
    E(f"{l}:")
def drain(i):
    for g in range(4):
        for u in range(2):
            E(f"ds_read_b64_tr_b16 {a(4*(10*g+i)+2*u,2)}, v{218+g} offset:{(i%4)*5120 + u*1280}")
    for u in range(2):
        E(f"ds_read_b64_tr_b16 {v(vF4+4*i+2*u,2)}, v{vTa+1} offset:{(i%4)*5120 + u*1280}")
lnkv(True, lambda: wloads(2, 2))
TS("lnkv_done")
kvpost(lambda: vmw("W0"))
NKV = len(VM)
TS("kv_stored")
drain(0)
wloads(3, 3)
woprep_issue(); VM.append("wop")
for i in range(4): E(f"v_mov_b32 v{92+i}, 0x3f803f80")
for k in range(10): E(f"ds_write_b128 v222, {v(G+4*k,4)} offset:{k*1024}")
AM = v(96, 16); A4 = a(240, 16); CM = a(160, 16); C4 = a(224, 16)
def breads(i):
    for g in range(1, 4):
        E(f"ds_read_b128 {v(56+12*(i%3)+4*(g-1),4)}, v{222+g} offset:{i*1024}")
def p1m(i):
    b = 56 + 12*(i % 3)
    E(f"{MF} {A4}, {v(vF4+4*i,4)}, {v(G+4*i,4)}, {'0' if i == 0 else A4}")
    for g in range(4):
        E(f"{MF} {AM}, {a(4*(10*g+i),4)}, {v(G+4*i,4) if g == 0 else v(b+4*(g-1),4)}, {'0' if i == 0 and g == 0 else AM}")
        E(f"{MF} {CM}, {a(4*(10*g+i),4)}, v[92:95], {'0' if i == 0 and g == 0 else CM}")
    E(f"{MF} {C4}, {v(vF4+4*i,4)}, v[92:95], {'0' if i == 0 else C4}")
def cap(f, *a_):
    n0 = len(E.L); f(*a_); out = [x.strip() for x in E.L[n0:]]; del E.L[n0:]; return out
for i in range(1, 10):
    vmw(f"W{i}")
    E("s_waitcnt lgkmcnt(0)\ns_barrier")
    if os.environ.get("KTS"): TS(f"k{i}")
    wl = cap(wloads, (i-1) % 4, i+3) if i <= 6 else []
    rd_ = cap(drain, i) + (cap(breads, 0) if i == 1 else []) + cap(breads, i)
    ms = cap(p1m, i-2) if i >= 2 else []
    grp = [wl[0:3], wl[3:4], wl[4:5], wl[5:6], wl[6:]] if wl else [[]]*5
    per = -(-len(rd_)//5)
    for m_ in range(5):
        ot = rd_[m_*per:(m_+1)*per] + grp[m_]
        if ms: E(ms[2*m_])
        for x in ot[:len(ot)//2]: E(x)
        if ms: E(ms[2*m_+1])
        for x in ot[len(ot)//2:]: E(x)
    if i == 1: kvflag(len(VM) - NKV)
    if i == 7: xres_loads(); VM += ["xr"]*3
p1m(8)
E(f"""v_mov_b32 v{vPI}, v{vJ}
v_and_b32 v{vOT}, 7, v{vL}
s_lshl_b32 s{sT+8}, s{sW}, 3
v_add_u32 v{vOT}, s{sT+8}, v{vOT}
s_mul_i32 s{sT+8}, s{sCB}, 204800
s_mul_i32 s{sT+9}, s{sW}, 40960
s_add_u32 s{sT+8}, s{sT+8}, s{sT+9}
s_lshl_b32 s{sT+9}, s{sRB}, 10
s_add_u32 s{sT+8}, s{sT+8}, s{sT+9}
s_add_u32 s{sT+8}, s{sT+8}, {WS_WQF}
s_lshl_b32 s{sT}, s{sW}, 10
s_add_u32 s{sT}, s{sT}, {RING}
v_add_u32 v6, s{sT}, v{vL16}
v_add_u32 v7, {2*PREG}, v6
s_waitcnt lgkmcnt(0)""")
p1m(9)
E(f"s_cmp_lt_u32 s{sRB}, 10\ns_cbranch_scc1 L_wqf\nL_wqf_ret:\ns_nop 9")
if os.environ.get("KTS"): TS("mfma_done")
for q in range(4): E(f"ds_write_b128 v222, {a(240+4*q,4)} offset:{RING+q*1024}")
for q in range(4): E(f"ds_write_b128 v222, {a(224+4*q,4)} offset:{RING+2*5120+q*1024}")
for i in range(16): E(f"v_accvgpr_read_b32 v{vCQ+i}, a{160+i}")
E("s_waitcnt lgkmcnt(0)\ns_barrier")
for wr in range(4): E(f"ds_read_b128 {v(56+4*wr,4)}, v{6+wr//2} offset:{(wr%2)*PREG}")
for wr in range(4): E(f"ds_read_b128 {v(72+4*wr,4)}, v{6+wr//2} offset:{(wr%2)*PREG+2*5120}")
E("s_waitcnt lgkmcnt(4)")
sum4q(112, 56, 4)
E("s_waitcnt lgkmcnt(0)")
sum4q(vCQ+16, 72, 4)
E("L_qpost:")
E(f"v_mul_f32 v6, {f2u(CSC)}, v{vAL}\nv_mul_f32 v7, v6, v{vMU}")
for i in range(0, 20, 2): E(f"v_pk_mul_f32 {v(96+i,2)}, {v(96+i,2)}, v[6:7] op_sel_hi:[1,0]")
for i in range(0, 20, 2): E(f"v_pk_fma_f32 {v(96+i,2)}, {v(vCQ+i,2)}, v[6:7], {v(96+i,2)} op_sel:[0,1,0] op_sel_hi:[1,1,1] neg_lo:[0,1,0] neg_hi:[0,1,0]")
for i in range(10): E(f"v_cvt_pk_bf16_f32 v{56+i}, v{96+2*i}, v{97+2*i}")
E(f"""s_lshl_b32 s{sT}, s{sW}, 11
s_add_u32 s{sT}, s{sT}, {QAREA}
s_lshl_b32 s{sT+1}, s{sW}, 9
s_add_u32 s{sT+1}, s{sT+1}, {QAREA+8192}
v_lshl_add_u32 v7, v{vH}, 5, v{vPI}
v_lshl_add_u32 v5, v7, 4, s{sT}
v_lshl_add_u32 v6, v7, 3, s{sT+1}
ds_write_b128 v5, v[56:59]
ds_write_b128 v5, v[60:63] offset:1024
ds_write_b64 v6, v[64:65]
s_lshl_b32 s{sT}, s{sW}, 14
s_add_u32 s{sKVO}, s{sT}, s{sKV}
s_lshl_b32 s{sT}, s{sW}, 13
s_add_u32 s{sT}, s{sT}, s{sKV}
s_add_u32 s{sKVO+4}, s{sT}, {K2OFF}
s_mul_i32 s{sT}, s{sW}, {16*1344}
s_add_u32 s{sT}, s{sT}, s{sKV}
s_add_u32 s{sKVO+6}, s{sT}, {VOFF}""")
for i in range(1, 4): E(f"s_add_u32 s{sKVO+i}, s{sKVO}, {4096*i}")
E(f"s_add_u32 s{sKVO+5}, s{sKVO+4}, 4096")
for i in range(1, 6): E(f"s_add_u32 s{sKVO+6+i}, s{sKVO+6}, {3*1344*i}")
def segoffs(base_imm, cbmul):
    E(f"""s_mul_i32 s{sT}, s{sCB}, {cbmul}
    s_mul_i32 s{sT+1}, s{sW}, 40960
    s_add_u32 s{sT}, s{sT}, {base_imm}
    s_add_u32 s{sT+1}, s{sT+1}, s{sT}""")
    for g in range(4):
        E(f"""s_add_u32 s{sT+2}, s{sW}, {g}
        s_and_b32 s{sT+2}, s{sT+2}, 3
        s_mul_i32 s{sT+2}, s{sT+2}, 10240
        s_add_u32 s{sSEG+g}, s{sT+2}, s{sT+1}""")
    E(f"s_mul_i32 s{sT+2}, s{sW}, 10240\ns_add_u32 s{sT}, s{sT}, 163840\ns_add_u32 s{sSEG+4}, s{sT}, s{sT+2}")
TS("q_done")
E(f"""s_lshl_b32 s{sT+2}, s{sRB}, 8
s_add_u32 s{sT+2}, s{sT+2}, {WS_FL+0x10000}
v_and_b32 v6, 3, v{vL}
v_lshlrev_b32 v6, 6, v6
buffer_load_dword v13, v6, {ws}, s{sT+2} offen sc1
s_branch L_idle
L_idle_ret:""")
def flagloads(base):
    E(f"v_lshlrev_b32 v5, 6, v{vL}")
    for i in range(4): E(f"s_add_u32 s{sT+i}, s{sFLK}, {base+i*4096}")
    for i in range(4): E(f"buffer_load_dword v{8+i}, v5, {ws}, s{sT+i} offen sc1")
def flagcheck(n=0):
    E(f"s_waitcnt vmcnt({n})")
    for i in range(4): E(f"v_xor_b32 v{8+i}, s{sTAG}, v{8+i}")
    E("v_or_b32 v8, v8, v9\nv_or3_b32 v8, v8, v10, v11")
E(f"""v_lshrrev_b32 v5, 1, v{vJ}
s_lshl_b32 s{sT}, s{sW}, 4
v_add_u32 v5, s{sT}, v5
v_mov_b32 v6, s{sRB}
v_cmp_eq_u32 vcc, 1, v{vH}
v_and_b32 v7, 1, v{vJ}
v_and_b32 v8, 3, v{vJ}
v_cndmask_b32 v5, v5, v6, vcc
v_cndmask_b32 v7, v7, v8, vcc
v_lshrrev_b32 v6, 3, v5
v_and_b32 v5, 7, v5
v_lshl_add_u32 v5, v6, 5, v5
v_lshl_add_u32 v5, v7, 3, v5
v_lshlrev_b32 v5, 6, v5
s_waitcnt lgkmcnt(0)
s_barrier""")
def body():
    E(f"buffer_load_dword v8, v5, {ws}, s{sFLK} offen sc1\ns_waitcnt vmcnt(0)")
spin(body, f"v_cmp_ne_u32 vcc, s{sTAG}, v8")
TS("kv_ready")
stop(1)
def kvloads(t):
    L = []
    if t % 2 == 0:
        p = t // 2
        L.append(f"buffer_load_dwordx4 {a(aK2+4*p,4)}, v{vL16}, {ws}, s{sKVO+4+p//4} offen offset:{(p%4)*1024} sc1")
    L.append(f"buffer_load_dwordx4 {a(aK1+4*t,4)}, v{vL16}, {ws}, s{sKVO+t//4} offen offset:{(t%4)*1024} sc1")
    for m in range(2):
        L.append(f"buffer_load_dwordx4 {a(aV+8*t+4*m,4)}, v{vVO}, {ws}, s{sKVO+6+t//3} offen offset:{(t%3)*1344+m*672} sc1")
    return L
def qreads(r):
    q = vQ + 10*(r % 2)
    return [f"ds_read_b128 {v(q,4)}, v{vQa} offset:{r*128}", f"ds_read_b128 {v(q+4,4)}, v{vQa} offset:{r*128+1024}",
            f"ds_read_b64 {v(q+8,2)}, v{vQb} offset:{r*64}"]
def qk(T):
    r, t = T // 16, T % 16
    S = vS + 32*(T % 2); q = vQ + 10*(r % 2)
    return [f"{MF} {v(S,16)}, {a(aK1+4*t,4)}, {v(q,4)}, 0",
            f"{MF} {v(S+16,16)}, {a(aK1+4*t,4)}, {v(q+4,4)}, 0",
            f"v_mfma_f32_32x32x4_2b_bf16 {v(S,32)}, {a(aK2+2*t,2)}, {v(q+8,2)}, {v(S,32)}"]
def pv(T, q):
    t = T % 16; P = vP + 8*q; O = a(aO+16*q, 16)
    return [f"{MF} {O}, {a(aV+8*t,4)}, {v(P,4)}, {'0' if t == 0 else O}", f"{MF} {O}, {a(aV+8*t+4,4)}, {v(P+4,4)}, {O}"]
def sm(T, q):
    S = vS + 32*(T % 2) + 16*q; P = vP + 8*q; va = []
    for k in range(8):
        va += [f"v_exp_f32 v{S+2*k}, v{S+2*k}", f"v_exp_f32 v{S+2*k+1}, v{S+2*k+1}"]
        if k > 0: va.append(f"v_cvt_pk_bf16_f32 v{P+k-1}, v{S+2*k-2}, v{S+2*k-1}")
    va.append(f"v_cvt_pk_bf16_f32 v{P+7}, v{S+14}, v{S+15}")
    return va
def owrite(qt):
    return [f"ds_write_b128 v{vOST}, {a(aO+16*(qt%2)+4*g,4)} offset:{qt*3072+g*1024}" for g in range(3)]
nld = lambda u: 4 if u % 2 == 0 else 3
PD = 6
WOq = []
rel = {}
for t in range(16):
    fr = [aK1+4*t] + ([aK2+4*(t//2)] if t % 2 else []) + ([aV+8*(t-1), aV+8*(t-1)+4] if t > 0 else [])
    rel[t] = fr; WOq += fr
def wfrag_load(dst, j, base=sSEG):
    seg, i = (4, j) if j < 10 else ((j-10)//10, (j-10) % 10)
    return f"buffer_load_dwordx4 {dst}, v{va3(i)}, {ws}, s{base+seg} offen offset:{(i%4)*1024} sc1"
def qseg(d=sT):
    for g in range(4): E(f"s_sub_u32 s{d+g}, s{sSEG+g}, {WS_WOF-WS_WQF}")
FREEQ = [60, 92, 208, 212, 216, 220]
WQr = lambda i: v(vWP+4*i, 4) if i < NPRE else (a(FREEQ[i-NPRE], 4) if i < NPRE+6 else a(WOq[i-NPRE-6], 4))
E.c("attention over this wave's 512 keys; exp uses the constant stand-in 0 for the row max, checked after the loop")
def rcloads():
    E(f"""buffer_load_dwordx4 v[208:211], v{vL16}, {ws}, s{sF} offen sc1
    buffer_load_dwordx4 v[212:215], v{vL16}, {ws}, s{sF} offen offset:1024 sc1""")
lrc = E.label("Lrc")
E(f"s_cmp_eq_u32 s{sLAY}, 0\ns_cbranch_scc1 {lrc}")
rcloads()
E(f"{lrc}:")
AV = []
def aload(t):
    L = kvloads(t); AV.extend([t]*len(L)); return L
def await_(t):
    last = max(i for i, x in enumerate(AV) if x == t)
    return f"s_waitcnt vmcnt({len(AV)-1-last})"
for t in range(2):
    for x in aload(t): E(x)
for x in qreads(0): E(x)
E(f"""v_mov_b32 v8, -1
v_mov_b32 v9, -1
v_mov_b32 v10, -1
v_mov_b32 v11, -1
s_cmp_eq_u32 s{sLAY}, 0
s_cbranch_scc1 L_loc
L_loc_ret:
s_mul_i32 s{sT}, s{sRB}, 40960
s_mul_i32 s{sT+1}, s{sW}, 10240
s_add_u32 s{sT}, s{sT}, s{sT+1}
s_and_b32 s{sT+1}, s{sCB}, 1
s_mul_i32 s{sT+1}, s{sT+1}, 5120
s_add_u32 s{sT}, s{sT}, s{sT+1}
s_lshr_b32 s{sT+1}, s{sCB}, 1
s_mul_i32 s{sT+1}, s{sT+1}, {WS_VB-WS_OB}
s_add_u32 s{sT}, s{sT}, s{sT+1}
s_add_u32 s{sT}, s{sT}, {WS_OB}""")
for x in aload(2): E(x)
E.c("poison this cluster's hand-off buffers with the not-yet-written marker (plain stores only if the whole cluster shares one L2)")
def pst(f):
    for i in range(5):
        E(f"buffer_store_dwordx4 v[8:11], v{va3(i)}, {ws}, s{sT} offen offset:{(i%4)*1024} {f}")
dual(pst); AV.extend(["p"]*5)
E(f"s_waitcnt lgkmcnt(0)\n{await_(0)}")
x = qk(0)
E(x[0] + "\n" + x[1] + "\ns_nop 7\ns_nop 1\n" + x[2] + "\ns_nop 15\ns_nop 3")
jw = 0
for T in range(64):
    if T in (16, 32, 48) or (os.environ.get("R1") and T in (0, 1, 3, 6, 10)): TS(f"att{T}")
    n = qk(T+1) if T < 63 else [None]*3
    po = pv(T-1, 1) if T > 0 else [None]*2
    pe = pv(T, 0)
    ve, vo = sm(T, 0), sm(T, 1)
    pre = []; mid1 = []; mid2 = []; post = []
    if T + 1 < 16: pre.append(await_(T+1))
    sched = {0: (3, 4), 1: (5, 6), 2: (7, 8)}
    for u in sched.get(T, (T+6,) if T+6 < 16 else ()):
        (mid1 if u in (3, 5, 7) or T > 2 else mid2).extend(aload(u))
    if T % 16 == 0 and T > 0:
        mid1 += owrite(2*(T//16) - 2); post += owrite(2*(T//16) - 1)
    if T in (8, 24, 45): mid1 += qreads(T//16 + 1)
    if T % 16 == 15 and T < 48: pre.append("s_waitcnt lgkmcnt(0)")
    if T >= 48:
        for r_ in rel[T-48]:
            if jw < 50: mid2.append(wfrag_load(a(r_, 4), jw)); jw += 1
    for x in pre: E(x)
    seq = [(n[0], ve[0:6]), (po[0], ve[6:12]), (n[1], ve[12:18]), (po[1], ve[18:24]), (n[2], vo[0:10]), (pe[0], vo[10:17]), (pe[1], vo[17:24])]
    for i, (m, vs) in enumerate(seq):
        if m: E(m)
        for x in vs: E(x)
        if i == 1:
            for x in mid1: E(x)
        if i == 4:
            for x in mid2: E(x)
    for x in post: E(x)
    def rolehook(bit, name):
        E(f"s_bitcmp1_b32 s{sROLE}, {bit}\ns_cbranch_scc1 L_{name}\nL_{name}_ret:")
    if T == 1: E(f"s_cmp_lg_u32 s{sLAY}, 0\ns_cbranch_scc1 L_top2\nL_top2_ret:")
    if T == 5: rolehook(0, "u2")
    if T == 14: rolehook(1, "dh")
    if T == 17: rolehook(1, "d2")
    if T == 23: rolehook(4, "h1")
    if T == 26: rolehook(4, "h2")
    if T == 29: rolehook(4, "h3")
    if T == 37: rolehook(2, "s1")
    if T == 41: rolehook(2, "s2")
    if T == 58: rolehook(3, "lt1")
    if T == 16: E(f"s_cmp_eq_u32 s{sLAY}, 0\ns_cbranch_scc1 L_hook10\nL_hook10_ret:")
    if T == 21: E(f"s_waitcnt vmcnt(1)\ns_barrier\ns_cmp_eq_u32 s{sW}, 0\ns_cbranch_scc1 L_hook28\nL_hookret28:")
    if T >= 2 and (T-2) % 4 == 0 and (T-2)//4 < 10:
        sl = (T-2)//4
        if sl == 5: E(f"s_mov_b32 s{sDS}, s{sD5}")
        if sl == 7: E(f"s_add_u32 s{sDS}, s{sDS}, s{sD5+1}")
        sr = WG if sl < 5 else T2
        AV.append("d")
        E(f"buffer_load_dwordx4 v12, s[{sr}:{sr+3}], s{sDS} offen lds\ns_add_u32 m0, m0, 1024\ns_add_u32 s{sDS}, s{sDS}, s{sDT}")
    if T == 27: flagloads(0x8000)
    if T == 33:
        flagcheck(1)
        E(f"""v_cmp_ne_u32 vcc, 0, v8
        s_cmp_eq_u32 s{sLAY}, 0
        s_cselect_b64 s[{sEX}:{sEX+1}], -1, 0
        s_nop 1
        s_or_b64 vcc, vcc, s[{sEX}:{sEX+1}]
        s_cbranch_vccnz L_hook47
        L_hookret47:""")
TS("att64")
for x in pv(63, 1): E(x)
E("s_nop 7\ns_nop 1")
for x in owrite(6): E(x)
E(f"""s_mul_i32 s{sT}, s{sW}, 6144
v_add_u32 v6, s{sT}, v{vL16}
v_add_u32 v7, {2*OST}, v6""")
for x in owrite(7): E(x)
E(f"s_bitcmp1_b32 s{sROLE}, 3\ns_cbranch_scc1 L_lt2\nL_lt2_ret:")
E("s_waitcnt lgkmcnt(0)\ns_barrier\nL_ored:")
for wr in range(4):
    for qi in range(6):
        E(f"ds_read_b128 {v(16+(wr*6+qi)*4,4)}, v{6 if wr < 2 else 7} offset:{(wr%2)*OST + qi*1024}")
E(f"""s_mul_i32 s{sT+10}, s{sRB}, 40960
s_mul_i32 s{sT+1}, s{sCB}, 10240
s_add_u32 s{sT+9}, s{sT+10}, s{sT+1}
s_add_u32 s{sT+1}, s{sT+9}, {WS_OB}
s_mul_i32 s{sT+2}, s{sW}, 10240
s_add_u32 s{sT+10}, s{sT+10}, s{sT+2}
v_bfe_u32 v5, v{vL}, 3, 2
v_mul_u32_u24 v5, 2560, v5
v_lshl_add_u32 v5, v{vOT}, 4, v5
v_lshl_add_u32 v9, v{vH}, 9, v5
v_lshl_add_u32 v10, v{vH}, 30, v5
s_waitcnt lgkmcnt(0)
s_barrier""")
sum4q(16, 16, 24)
lla = E.label("Lla")
E(f"s_bitcmp0_b32 s{sROLE}, 3\ns_cbranch_scc1 {lla}")
for i in range(0, 12, 2): E(f"v_pk_add_f32 {v(16+i,2)}, {v(16+i,2)}, {v(208+i,2)}")
for i in range(0, 12, 2): E(f"v_pk_add_f32 {v(28+i,2)}, {v(28+i,2)}, {v(224+i,2)}")
E(f"{lla}:")
E.c("guard: the stand-in 0 is only kept when the row sums prove that no exp over/underflowed (and the -old/+new key swap did not cancel); else redo with the true max")
E(f"""s_mov_b32 s{sT+2}, {f2u(2.0**-60)}
s_mov_b32 s{sT+3}, {f2u(2.0**40)}
v_mul_f32 v40, {f2u(2.0**-12)}, v25
v_mul_f32 v41, {f2u(2.0**-12)}, v37
v_max_f32 v40, s{sT+2}, v40
v_max_f32 v41, s{sT+2}, v41
v_cmp_nle_f32 vcc, v40, v24
v_cmp_nle_f32 s[{sT+4}:{sT+5}], v41, v36
v_cmp_nge_f32 s[{sT+6}:{sT+7}], s{sT+3}, v24
v_cmp_nge_f32 s[{sEX}:{sEX+1}], s{sT+3}, v36
v_mov_b32 v5, v24
v_mov_b32 v6, v24
v_mov_b32 v7, v36
v_mov_b32 v8, v36
s_or_b32 s{sT+5}, s{sT+5}, vcc_hi
s_or_b32 s{sT+7}, s{sT+7}, s{sEX+1}
s_or_b32 s{sT+5}, s{sT+5}, s{sT+7}
s_cbranch_scc1 L_fb
L_fb_ret:
v_permlane32_swap_b32 v5, v6
v_permlane32_swap_b32 v7, v8
s_nop 1
v_rcp_f32 v6, v6
v_rcp_f32 v8, v8
s_nop 0""")
for i in range(12): E(f"v_mul_f32 v{16+i}, v{16+i}, v6")
for i in range(12): E(f"v_mul_f32 v{28+i}, v{28+i}, v8")
for i in range(4): E(f"v_cvt_pk_bf16_f32 v{56+i}, v{16+2*i}, v{17+2*i}")
for i in range(4): E(f"v_cvt_pk_bf16_f32 v{60+i}, v{28+2*i}, v{29+2*i}")
for i in range(2): E(f"v_cvt_pk_bf16_f32 v{64+i}, v{24+2*i}, v{25+2*i}")
for i in range(2): E(f"v_cvt_pk_bf16_f32 v{66+i}, v{36+2*i}, v{37+2*i}")
def ost(f):
    E(f"""buffer_store_dwordx4 v[56:59], v9, {ws}, s{sT+1} offen {f}
    buffer_store_dwordx4 v[60:63], v9, {ws}, s{sT+1} offen offset:1024 {f}
    buffer_store_dwordx4 v[64:67], v10, {ws}, s{sT+1} offen offset:2048 {f}""")
E(f"s_add_u32 s{sT}, s{sT+10}, {WS_OB}")
TS("o_ready")
qseg(sQS)
lqs = E.label("Lqs")
E(f"s_cmp_eq_u32 s{sLAY}, 0\ns_cbranch_scc1 {lqs}")
for g in range(4): E(f"s_mov_b32 s{sQS+g}, {OOB}")
E(f"{lqs}:")
pubgather(ost, sT)
TS("o_gathered")
stop(2)
def hgemm(w4, wm, write_bb, wait_fn=None):
    RB_ = 68
    A4 = a(240, 16); AM = v(96, 16)
    def rd(i): E(f"ds_read_b128 {v(RB_+4*((i-10)%7),4)}, v{6+i//10} offset:{(i%10)*1024}")
    for i in range(10):
        E(f"{MF} {A4}, {w4(i)}, {v(G+4*i,4)}, {'0' if i == 0 else A4}")
        if wait_fn: wait_fn(-1)
        if i == 4 and write_bb: E("s_barrier")
        if i >= 4: rd(6 + i)
        if 1 <= i <= 3:
            E(f"""s_add_u32 s{sT+7}, s{sW}, {i}
            s_and_b32 s{sT+7}, s{sT+7}, 3
            s_mul_i32 s{sT+7}, s{sT+7}, 10240
            v_add_u32 v{6+i}, s{sT+7}, v{vL16}""")
    for i in range(40):
        if wait_fn: wait_fn(i)
        if i >= 10:
            E(f"s_waitcnt lgkmcnt({min(5, 39-i)})")
        src_ = v(G+4*i, 4) if i < 10 else v(RB_+4*((i-10) % 7), 4)
        E(f"{MF} {AM}, {wm(i)}, {src_}, {'0' if i == 0 else AM}")
        if i == 0:
            E(f"""s_lshl_b32 s{sT+7}, s{sW}, 12
            s_add_u32 s{sT+7}, s{sT+7}, {P4}
            v_add_u32 v10, s{sT+7}, v{vL16}
            s_lshl_b32 s{sT+7}, s{sW}, 10
            s_add_u32 s{sT+7}, s{sT+7}, {P4}
            v_add_u32 v56, s{sT+7}, v{vL16}""")
        if i == 6:
            for q in range(4): E(f"ds_write_b128 v10, {a(240+4*q,4)} offset:{q*1024}")
        if i >= 10 and i + 6 < 40: rd(i + 6)
        if i == 33: E("s_barrier")
        if i == 34:
            pass
    for wr in range(4): E(f"ds_read_b128 {v(68+4*wr,4)}, v56 offset:{wr*4096}")
    E("s_waitcnt lgkmcnt(0)\ns_barrier")
    sum4q(112, 68, 4)
E.c("output projection + residual")
QN = [NPRE]
def qnext():
    E(wfrag_load(WQr(QN[0]), 10+QN[0], sQS)); QN[0] += 1
def wfo(i):
    if i < 0:
        if QN[0] < NPRE+6: qnext()
    elif QN[0] < 30 and i % 2 == 1: qnext()
hgemm(lambda i: a(WOq[i], 4), lambda i: a(WOq[10+i], 4), True, wfo)
E("s_nop 1")
for i in range(10):
    E(f"""v_lshlrev_b32 v5, 16, v{vXR+i}
    v_and_b32 v6, 0xffff0000, v{vXR+i}
    v_add_f32 v5, v5, v{96+2*i}
    v_add_f32 v6, v6, v{97+2*i}
    v_cvt_pk_bf16_f32 v{vXR+i}, v5, v6""")
E(f"""s_mul_i32 s{sT}, s{sW}, 2560
s_add_u32 s{sT}, s{sT}, s{sT+9}
s_add_u32 s{sT}, s{sT}, {WS_VB}
v_lshlrev_b32 v7, 4, v{vJ}
v_lshl_add_u32 v7, v{vH}, 3, v7
s_add_u32 s{sT+1}, s{sT+10}, {WS_VB}""")
def vst(f):
    E(f"""buffer_store_dwordx4 {v(vXR,4)}, v{vL16}, {ws}, s{sT} offen {f}
    buffer_store_dwordx4 {v(vXR+4,4)}, v{vL16}, {ws}, s{sT} offen offset:1024 {f}
    buffer_store_dwordx2 {v(vXR+8,2)}, v7, {ws}, s{sT} offen offset:2048 {f}""")
TS("v_ready")
pubgather(vst, sT+1)
TS("v_gathered")
lnkv(False, perk=qnext)
assert QN[0] == 40
TS("ln2_done")
lnk = E.label("Lnk")
E(f"""s_cmp_lg_u32 s{sLAY}, 0
s_cbranch_scc1 {lnk}
s_add_u32 s{sKV}, s{sKV}, 0x40000
s_add_u32 s{sFLK}, s{sFLK}, 0x4000""")
kvpost()
E(f"{lnk}:")
E.c("router score, the two best tokens of this row block are published as candidates")
E(f"""v_fma_f32 v7, -v{vMU}, v{vCR}, v81
v_mul_f32 v7, v7, v{vRS}
s_lshl_b32 s{sT}, s{sRB}, 5
s_sub_u32 s{sT}, 2047, s{sT}
s_mov_b32 s{sT+1}, 0xfffff800
v_ashrrev_i32 v6, 31, v7
v_or_b32 v6, 0x80000000, v6
v_xor_b32 v6, v6, v7
v_sub_u32 v5, s{sT}, v{vJ}
v_and_or_b32 v{vKEY}, v6, s{sT+1}, v5""")
wavemax(vKEY, sT+8, 2)
E(f"v_cmp_eq_u32 s[{sEX}:{sEX+1}], s{sT+8}, v{vKEY}\ns_nop 1\nv_cndmask_b32 v8, v{vKEY}, 0, s[{sEX}:{sEX+1}]")
wavemax(8, sT+9, 2)
lr = E.label("Lr")
E(f"""v_cmp_eq_u32 vcc, s{sT+9}, v{vKEY}
s_mul_i32 s{sT}, s{sRB}, 2560
s_mul_i32 s{sT+1}, s{sCB}, 320
s_add_u32 s{sT}, s{sT}, s{sT+1}
s_mul_i32 s{sT+1}, s{sW}, 80
s_add_u32 s{sT}, s{sT}, s{sT+1}
s_add_u32 s{sT}, s{sT}, s{sSM}
s_add_u32 s{sT}, s{sT}, {SM_CAND}
v_cndmask_b32 v5, 0, 1, vcc
s_or_b64 exec, vcc, s[{sEX}:{sEX+1}]
v_mul_u32_u24 v6, 1280, v5
v_lshl_add_u32 v8, v{vH}, 4, v6
v_lshl_add_u32 v9, v{vH}, 3, v6
buffer_store_dwordx4 {v(vXR,4)}, v8, {ws}, s{sT} offen sc1
buffer_store_dwordx4 {v(vXR+4,4)}, v8, {ws}, s{sT} offen offset:32 sc1
buffer_store_dwordx2 {v(vXR+8,2)}, v9, {ws}, s{sT} offen offset:64 sc1
s_or_b32 s{sT}, s{sCB}, s{sW}
s_cmp_lg_u32 s{sT}, 0
s_cbranch_scc1 {lr}
v_mov_b32 v56, v{vKEY}
v_mov_b32 v57, v{vMU}
v_mov_b32 v58, v{vRS}
v_mov_b32 v59, v7
v_lshlrev_b32 v5, 4, v5
v_lshl_add_u32 v5, v{vH}, 30, v5
s_lshl_b32 s{sT}, s{sRB}, 5
s_add_u32 s{sT}, s{sT}, s{sSM}
buffer_store_dwordx4 v[56:59], v5, {ws}, s{sT} offen sc1
{lr}:
s_mov_b64 exec, -1""")
TS("r_stored")
def x2():
    E(f"v_mul_f32 v7, v{vMU}, v{vRS}\nv_add_f32 v8, 1.0, v{vRS}")
    for i in range(10):
        E(f"""v_lshlrev_b32 v5, 16, v{vXR+i}
        v_and_b32 v6, 0xffff0000, v{vXR+i}
        v_fma_f32 v5, v5, v8, -v7
        v_fma_f32 v6, v6, v8, -v7
        v_cvt_pk_bf16_f32 v{vXR+i}, v5, v6""")
E(f"s_cmp_lg_u32 s{sLAY}, 0\ns_cbranch_scc1 L_tail")
x2()
E.c("the two candidate tokens are moved into the last attention round (their q may still change)")
E(f"""s_and_b32 s{sT+8}, s{sT+8}, 31
s_and_b32 s{sT+9}, s{sT+9}, 31
s_sub_u32 s{sT+8}, 31, s{sT+8}
s_sub_u32 s{sT+9}, 31, s{sT+9}
s_cmp_eq_u32 s{sT+9}, 31
s_cselect_b32 s{sT+4}, 30, 31
s_cmp_eq_u32 s{sT+8}, 29
s_cselect_b32 s{sT+5}, 28, 29
s_cmp_ge_u32 s{sT+8}, 24
s_cselect_b32 s{sT+8}, s{sT+4}, s{sT+8}
s_cmp_ge_u32 s{sT+9}, 24
s_cselect_b32 s{sT+9}, s{sT+5}, s{sT+9}""")
for r_ in (vPI, vOT):
    E(f"v_mov_b32 v5, v{r_}")
    for x_, y_ in ((sT+8, sT+4), (sT+4, sT+8), (sT+9, sT+5), (sT+5, sT+9)):
        E(f"v_cmp_eq_u32 vcc, s{x_}, v5\nv_mov_b32 v6, s{y_}\ns_nop 0\nv_cndmask_b32 v{r_}, v{r_}, v6, vcc")
E(f"""s_mov_b32 s{sLAY}, 1
s_mov_b32 s{sF}, s{sSM}
s_add_u32 s{sSM}, s{sSM}, {SM_L}""")
def wf(i):
    if i == 0: kvflag(0, sT+10)
    if i == NPRE: E("s_waitcnt vmcnt(3)")
hgemm(lambda i: v(vF4+4*i, 4), WQr, False, wf)
E("s_branch L_qpost")
def ret(name, tail):
    E(f"s_cmp_eq_u32 s{sF}, {WS_SM}\ns_cbranch_scc1 L_{name}_ret")
    if tail: E(f"s_branch {tail}")
def retry(regs, reload_, pre="s_waitcnt vmcnt(0)", extra=None):
    l1 = E.label("Lrt"); l2 = E.label("Lrt")
    E(f"s_mov_b32 s{sT+11}, 0x80000\n{l1}:\n{pre}")
    (maxtree2 if len(regs) > 8 else (lambda r, t, _: maxtree(r, t)))(regs, 5, 6)
    if extra: extra()
    E(f"""v_cmp_eq_u32 vcc, -1, v5
    s_sub_u32 s{sT+11}, s{sT+11}, 1
    s_cbranch_scc1 {l2}
    s_nop 2
    s_cbranch_vccz {l2}""")
    reload_()
    E(f"s_waitcnt vmcnt(0)\ns_branch {l1}\n{l2}:")
def sel2(d, a_, b_, mask="vcc"):
    E(f"v_mov_b32 v{d}, s{a_}\nv_mov_b32 v10, s{b_}\nv_cndmask_b32 v{d}, v{d}, v10, {mask}")
def final_stores():
    srd(XO, pOUT, 2621440)
    E(f"""s_mul_i32 s{sT+4}, s{sCB}, 320
    s_mul_i32 s{sT+5}, s{sW}, 80
    s_add_u32 s{sT+4}, s{sT+4}, s{sT+5}
    s_mul_i32 s{sT}, s{sRB}, 40960
    s_add_u32 s{sT+4}, s{sT+4}, s{sT}
    v_mul_u32_u24 v5, 1280, v{vJ}
    v_lshl_add_u32 v6, v{vH}, 3, v5
    v_lshl_add_u32 v5, v{vH}, 4, v5
    s_andn2_b64 exec, exec, s[{sSP}:{sSP+1}]
    buffer_store_dwordx4 {v(vXR,4)}, v5, s[{XO}:{XO+3}], s{sT+4} offen {os.environ.get("OF","")}
    buffer_store_dwordx4 {v(vXR+4,4)}, v5, s[{XO}:{XO+3}], s{sT+4} offen offset:32 {os.environ.get("OF","")}
    buffer_store_dwordx2 {v(vXR+8,2)}, v6, s[{XO}:{XO+3}], s{sT+4} offen offset:64 {os.environ.get("OF","")}
    s_mov_b64 exec, -1""")

U = 168
def uinit():
    E(f"v_mov_b32 v5, 0x3f803f80\nv_cmp_eq_u32 vcc, 2, v{vJ}\ns_nop 1\nv_cndmask_b32 v{U}, 0, v5, vcc")
    for i in range(1, 40): E(f"v_mov_b32 v{U+i}, v{U}")
E("L_tail:")
WB = os.environ.get("WB", "")
if WB == "a":
    E(f"s_cmp_lg_u32 s{sW}, 3\ns_cbranch_scc1 L_nowb\nbuffer_wbl2 sc1\nL_nowb:")
if WB == "b":
    E(f"s_lshr_b32 s{sT}, s2, 3\ns_or_b32 s{sT}, s{sT}, s{sW}\ns_cmp_lg_u32 s{sT}, 31\ns_cbranch_scc1 L_nowb\nbuffer_wbl2 sc1\nL_nowb:")
E(f"s_mov_b32 s{sF}, s{sSM}")
rcloads()
x2()
uinit()
E("s_waitcnt vmcnt(0)")
E("L_top2:")
E.c("router top-2 over the 128 candidates")
retry(range(208, 216), rcloads, pre="")
TS("r_gathered", True)
E("v_max_u32 v8, v208, v212\nv_min_u32 v9, v208, v212")
wavemax(8, sK1)
E(f"v_cmp_eq_u32 vcc, s{sK1}, v8\ns_nop 1\nv_cndmask_b32 v8, v8, v9, vcc")
wavemax(8, sK2)
for K_, I_, M_, S_, R_, O_ in ((sK1, sI1, sM1, sS1, sR1, sO1), (sK2, sI2, sM2, sS2, sR2, sO2)):
    E(f"""v_cmp_eq_u32 vcc, s{K_}, v212
    v_cmp_eq_u32 s[{sEX}:{sEX+1}], s{K_}, v208
    s_and_b32 s{I_}, s{K_}, 2047
    s_sub_u32 s{I_}, 2047, s{I_}
    v_cndmask_b32 v5, v209, v213, vcc
    v_cndmask_b32 v6, v210, v214, vcc
    v_cndmask_b32 v7, v211, v215, vcc
    s_cmp_lg_u64 vcc, 0
    s_cselect_b32 s{sT+1}, 64, 0
    s_or_b64 vcc, vcc, s[{sEX}:{sEX+1}]
    s_ff1_i32_b64 s{sT}, vcc
    s_add_u32 s{sT+1}, s{sT+1}, s{sT}
    s_mul_i32 s{O_}, s{sT+1}, 1280
    s_nop 1
    v_readlane_b32 s{M_}, v5, s{sT}
    v_readlane_b32 s{S_}, v6, s{sT}
    v_readlane_b32 s{R_}, v7, s{sT}""")
E(f"""s_lshl_b32 s{sT}, s{sRB}, 5
v_add_u32 v5, s{sT}, v{vJ}
v_cmp_eq_u32 vcc, s{sI1}, v5
v_cmp_eq_u32 s[{sEX}:{sEX+1}], s{sI2}, v5
s_mov_b32 s{sROLE}, 8
s_nop 2
s_or_b64 s[{sSP}:{sSP+1}], vcc, s[{sEX}:{sEX+1}]
s_cselect_b32 s{sROLE}, 12, 8""")
TS("top2", True)
E(f"""s_cmp_ge_u32 s2, 128
s_cbranch_scc1 L_d1
s_cmp_ge_u32 s2, 108
s_cbranch_scc1 L_nof
s_or_b32 s{sROLE}, s{sROLE}, 1""")
U = 168
E.c("FFN gate/up for the two routed tokens (LayerNorm folded in: rs*(v.W - mu*colsum(W)))")
def uloads():
    E(f"""v_cmp_eq_u32 vcc, 1, v{vJ}
    s_mul_i32 s{sT+2}, s{sW}, 320
    s_add_u32 s{sT+2}, s{sT+2}, s{sF}
    s_add_u32 s{sT+2}, s{sT+2}, {SM_CAND}""")
    sel2(7, sO1, sO2)
    E(f"""v_lshl_add_u32 v7, v{vH}, 4, v7
    s_mov_b32 s{sEX}, 3
    s_mov_b32 s{sEX+1}, 3
    s_mov_b64 exec, s[{sEX}:{sEX+1}]""")
    for k in range(10):
        E(f"buffer_load_dwordx4 {v(U+4*k,4)}, v7, {ws}, s{sT+2} offen offset:{k*32} sc1")
    E("s_mov_b64 exec, -1")
uloads()
ret("top2", None)
final_stores()
E(f"""L_u2:
s_mul_i32 s{sT}, s{sW}, 10240
s_add_u32 s{sT}, s{sT}, {FFNW}
v_bfe_u32 v5, v{vL}, 2, 2
v_lshl_add_u32 v5, v{vH}, 3, v5
v_lshlrev_b32 v5, 5, v5
v_and_b32 v6, 3, v{vL}
v_lshl_add_u32 v5, v6, 3, v5
v_bfe_u32 v6, v{vL}, 4, 1
v_mul_u32_u24 v6, 5120, v6
v_add3_u32 v11, v5, v6, s{sT}""")
def utr(h_):
    for k in range(5*h_, 5*h_+5):
        for u in range(2):
            E(f"ds_read_b64_tr_b16 {v(208+4*(k%5)+2*u,2)}, v11 offset:{k*512+u*128}")
utr(0)
lw_ = E.label("Luw")
E(f"s_cmp_eq_u32 s{sF}, {WS_SM}\ns_cbranch_scc1 {lw_}\ns_waitcnt vmcnt(3)\n{lw_}:")
retry(range(U, U+40), uloads, pre=f"s_waitcnt vmcnt({sum(nld(u) for u in (7,8,9,10,11)) + 1})")
def pwrite(acc, area=0, bar=True):
    E(f"""s_lshl_b32 s{sT}, s{sW}, 10
    s_add_u32 s{sT}, s{sT}, {FPC+area}
    v_lshl_add_u32 v5, v{vH}, 3, v{vJ}
    v_lshl_add_u32 v5, v5, 4, s{sT}
    s_mov_b32 s{sEX}, 0xff
    s_mov_b32 s{sEX+1}, 0xff
    s_nop 5
    s_mov_b64 exec, s[{sEX}:{sEX+1}]""")
    for g in range(4): E(f"ds_write_b128 v5, {v(acc+4*g,4)} offset:{g*256}")
    E("s_mov_b64 exec, -1")
    if bar: E("s_waitcnt lgkmcnt(0)\ns_barrier")
E("s_waitcnt lgkmcnt(0)")
for k in range(5): E(f"{MF} v[228:243], {v(208+4*k,4)}, {v(U+4*k,4)}, {'0' if k == 0 else 'v[228:243]'}")
utr(1)
E("s_waitcnt lgkmcnt(0)")
for k in range(5, 10): E(f"{MF} v[228:243], {v(208+4*(k%5),4)}, {v(U+4*k,4)}, v[228:243]")
pwrite(228)
lue = E.label("Lue")
E(f"""s_cmp_lg_u32 s{sW}, 0
s_cbranch_scc1 {lue}
v_bfe_u32 v5, v{vL}, 3, 1
v_lshlrev_b32 v5, 8, v5
v_bfe_u32 v6, v{vL}, 2, 1
v_lshl_add_u32 v5, v6, 7, v5
v_and_b32 v7, 3, v{vL}
v_lshl_add_u32 v5, v7, 2, v5
v_add_u32 v5, {FPC}, v5
v_bfe_u32 v6, v{vL}, 4, 1
v_lshl_add_u32 v7, v6, 4, v5
v_cmp_eq_u32 vcc, 1, v6""")
for wr in range(4):
    E(f"""ds_read_b32 v{208+wr}, v7 offset:{wr*1024}
    ds_read_b32 v{212+wr}, v7 offset:{wr*1024+512}
    ds_read_b32 v{216+wr}, v5 offset:{wr*1024+32}
    ds_read_b32 v{220+wr}, v5 offset:{wr*1024+512+32}""")
sel2(8, sM1, sM2); sel2(9, sS1, sS2)
E("s_waitcnt lgkmcnt(0)")
for b in (208, 212, 216, 220):
    E(f"v_add_f32 v{b}, v{b}, v{b+1}\nv_add_f32 v{b+2}, v{b+2}, v{b+3}\nv_add_f32 v{b}, v{b}, v{b+2}")
E(f"""v_fma_f32 v208, -v8, v216, v208
v_fma_f32 v212, -v8, v220, v212
v_mul_f32 v208, v208, v9
v_mul_f32 v212, v212, v9
v_mul_f32 v209, {f2u(-L2E)}, v208
v_exp_f32 v209, v209
v_mul_f32 v208, v208, v212
v_add_f32 v209, 1.0, v209
v_rcp_f32 v209, v209
v_mul_u32_u24 v6, 3456, v6
v_mul_f32 v208, v208, v209
v_and_b32 v7, 15, v{vL}
v_lshl_add_u32 v6, v7, 1, v6
v_mov_b32_dpp v209, v208 quad_perm:[1,0,3,2] row_mask:0xf bank_mask:0xf
s_lshl_b32 s{sT}, s2, 5
v_cvt_pk_bf16_f32 v208, v208, v209
s_add_u32 s{sT}, s{sT}, s{sF}
s_add_u32 s{sT}, s{sT}, {SM_H}
s_mov_b64 exec, 0x55555555
buffer_store_dword v208, v6, {ws}, s{sT} offen sc1
s_mov_b64 exec, -1""")
TS("up_done", True)
E(f"{lue}:")
ret("u2", "L_final")
E(f"""L_nof2:
s_cmp_le_u32 s2, 228
s_cselect_b32 s{sT}, 16, 0
s_cmp_eq_u32 s2, 232
s_cselect_b32 s{sT}, 16, s{sT}
s_or_b32 s{sROLE}, s{sROLE}, s{sT}""")
E("L_nof:")
ret("top2", None)
final_stores()
E("s_branch L_final")
E(f"""L_d1:
s_cmp_ge_u32 s2, 208
s_cbranch_scc1 L_nof2
s_or_b32 s{sROLE}, s{sROLE}, 2""")
E.c("FFN down projection, 8 columns per workgroup")
E(f"""s_mul_i32 s{sT}, s{sW}, 10240
s_add_u32 s{sT}, s{sT}, {FFNW}
v_bfe_u32 v5, v{vL}, 2, 2
v_lshl_add_u32 v5, v{vH}, 3, v5
v_bfe_u32 v6, v{vL}, 4, 1
v_lshl_add_u32 v5, v6, 5, v5
v_bfe_u32 v6, v{vL}, 1, 1
v_lshl_add_u32 v5, v6, 4, v5
v_lshlrev_b32 v5, 4, v5
v_and_b32 v6, 1, v{vL}
v_lshl_add_u32 v5, v6, 3, v5
v_add_u32 v5, s{sT}, v5""")
for k in range(7):
    for u in range(2):
        E(f"ds_read_b64_tr_b16 {v(212+4*k+2*u,2)}, v5 offset:{k*1024+u*64}")
E(f"v_bfe_u32 v5, v{vL}, 3, 1\nv_cmp_eq_u32 vcc, 1, v5")
sel2(242, sR1, sR2); sel2(241, sO1, sO2)
E(f"""v_and_b32 v7, 7, v{vL}
v_lshl_add_u32 v241, v7, 1, v241
v_bfe_u32 v5, v{vL}, 2, 1
v_mul_u32_u24 v5, 3456, v5
v_and_b32 v6, 3, v{vL}
v_lshl_add_u32 v5, v6, 5, v5
v_lshl_add_u32 v5, v{vH}, 4, v5
v_lshrrev_b32 v6, 3, v{vJ}
v_mul_f32 v242, {f2u(-L2E)}, v242
v_exp_f32 v242, v242
v_lshl_add_u32 v240, v6, 28, v5
v_add_f32 v242, 1.0, v242
v_rcp_f32 v242, v242""")
ret("top2", None)
def hloads():
    E(f"""s_sub_u32 s{sT+3}, s2, 128
    s_lshl_b32 s{sT+4}, s{sT+3}, 4
    s_add_u32 s{sT+4}, s{sT+4}, s{sF}
    s_add_u32 s{sT+4}, s{sT+4}, {SM_CAND}
    s_mul_i32 s{sT}, s{sW}, 896
    s_add_u32 s{sT}, s{sT}, s{sF}
    s_add_u32 s{sT}, s{sT}, {SM_H}
    s_cmp_eq_u32 s{sW}, 3
    s_cselect_b32 s{sT+1}, {OOB}, s{sT}""")
    for k in range(7):
        E(f"buffer_load_dwordx4 {v(U+4*k,4)}, v240, {ws}, s{sT+(1 if k == 6 else 0)} offen offset:{k*128} sc1")
    E(f"buffer_load_ushort v243, v241, {ws}, s{sT+4} offen sc1")
final_stores()
E("s_sleep 20")
E("L_dh:")
hloads()
ret("dh", None)
E("L_d2:")
retry(range(U, U+28), hloads, extra=lambda: E("v_lshl_or_b32 v6, v243, 16, v243\nv_max_u32 v5, v5, v6"))
TS("h_gathered", True)
E("s_waitcnt lgkmcnt(0)")
for k in range(7):
    E(f"{MF} v[196:211], {v(212+4*k,4)}, {v(U+4*k,4)}, {'0' if k == 0 else 'v[196:211]'}")
pwrite(196)
ldo = E.label("Ldo"); lde = E.label("Lde")
E(f"""s_cmp_lg_u32 s{sW}, 0
s_cbranch_scc1 {lde}
v_bfe_u32 v11, v{vL}, 3, 1
v_lshlrev_b32 v5, 6, v11
v_bfe_u32 v6, v{vL}, 2, 1
v_lshl_add_u32 v5, v6, 7, v5
v_and_b32 v6, 3, v{vL}
v_lshl_add_u32 v5, v6, 2, v5
v_add_u32 v5, {FPC}, v5
v_cmp_eq_u32 vcc, 1, v11""")
for wr in range(4):
    for kq in range(4):
        E(f"ds_read_b32 v{U+4*wr+kq}, v5 offset:{wr*1024+kq*256+kq*16}")
sel2(8, sM1, sM2); sel2(9, sS1, sS2); sel2(7, sI1, sI2)
E(f"""v_lshlrev_b32 v243, 16, v243
v_sub_f32 v241, v243, v8
v_fmac_f32 v243, v241, v9
v_and_b32 v6, 7, v{vL}
s_sub_u32 s{sT}, s2, 128
s_lshl_b32 s{sT}, s{sT}, 4
s_waitcnt lgkmcnt(0)""")
sum8(U, U); sum8(U+8, U+8)
E(f"""v_add_f32 v{U}, v{U}, v{U+8}
v_fmac_f32 v243, v{U}, v242
v_lshlrev_b32 v6, 1, v6
s_cmp_lg_u32 s{sF}, {WS_SM}
v_mov_b32_dpp v241, v243 quad_perm:[1,0,3,2] row_mask:0xf bank_mask:0xf
s_nop 0
v_cvt_pk_bf16_f32 v243, v243, v241
s_cbranch_scc1 {ldo}
v_mul_u32_u24 v5, 1280, v11
v_add_u32 v6, v5, v6
s_add_u32 s{sT}, s{sT}, {WS_SM+SM_XS}
s_mov_b64 exec, 0x5555
buffer_store_dword v243, v6, {ws}, s{sT} offen sc1
s_mov_b64 exec, -1
s_branch L_d2_ret
{ldo}:""")
srd(XO, pOUT, 2621440)
E(f"""v_mul_u32_u24 v5, 1280, v7
v_add_u32 v6, v5, v6
s_mov_b64 exec, 0x5555
buffer_store_dword v243, v6, s[{XO}:{XO+3}], s{sT} offen
s_mov_b64 exec, -1""")
TS("down_done")
E(f"{lde}:")
ret("d2", None)
E("L_final:")
if os.environ.get("WBE"):
    E(f"s_waitcnt vmcnt(0)\ns_barrier\ns_cmp_lg_u32 s{sW}, 3\ns_cbranch_scc1 L_nowb2\nbuffer_wbl2 sc1\nL_nowb2:")
TS("end")
E("L_dump:")
if PROF:
    E(f"""s_lshl_b32 s{sT}, s2, 2
    s_add_u32 s{sT}, s{sT}, s{sW}
    s_lshl_b32 s{sT}, s{sT}, 8
    s_add_u32 s{sT}, s{sT}, 0x1000000
    v_lshlrev_b32 v5, 2, v{vL}
    buffer_store_dword v253, v5, {ws}, s{sT} offen
    s_add_u32 s{sT}, s{sT}, 0x100000
    buffer_store_dword v252, v5, {ws}, s{sT} offen""")
E("L_exit2:\ns_endpgm")


spx = f"s_mov_b64 exec, s[{sSP}:{sSP+1}]"
def hxs():
    E(f"""v_mul_u32_u24 v7, 1280, v{vJ}
    v_lshl_add_u32 v7, v{vH}, 4, v7
    s_mul_i32 s{sT+2}, s{sW}, 320
    s_add_u32 s{sT+2}, s{sT+2}, {WS_SM+SM_XS}
    s_mov_b32 s{sEX}, 3
    s_mov_b32 s{sEX+1}, 3
    s_mov_b64 exec, s[{sEX}:{sEX+1}]""")
    for k in range(10):
        E(f"buffer_load_dwordx4 {v(U+4*k,4)}, v7, {ws}, s{sT+2} offen offset:{k*32} sc1")
    E("s_mov_b64 exec, -1")
def sqloads():
    for i in range(5):
        E(f"buffer_load_dwordx4 {v(224+4*i,4)}, v{va3(i)}, {ws}, s{sSQ} offen offset:{(i%4)*1024} sc1")
E(f"""L_h1:
s_sub_u32 s{sT}, s2, 208
s_min_u32 s{sT}, s{sT}, 19
s_mul_i32 s{sSQ}, s{sT}, 40960
s_mul_i32 s{sT}, s{sW}, 10240
s_add_u32 s{sSQ}, s{sSQ}, s{sT}
s_add_u32 s{sSQ}, s{sSQ}, {WS_WQF}""")
sqloads()
hxs()
E(f"""v_cmp_eq_u32 vcc, 1, v{vH}""")
sel2(5, sI1, sI2)
lhk = E.label("Lhk")
E(f"""v_lshrrev_b32 v6, 5, v5
s_cmp_eq_u32 s2, 232
s_cbranch_scc0 {lhk}
v_mul_u32_u24 v6, 1344, v6
v_bfe_u32 v7, v5, 4, 1
v_mul_u32_u24 v7, 672, v7
v_bfe_u32 v8, v5, 2, 1
v_mul_u32_u24 v8, 336, v8
v_add3_u32 v6, v6, v7, v8
v_bfe_u32 v7, v5, 3, 1
v_lshl_add_u32 v6, v7, 3, v6
v_and_b32 v7, 3, v5
v_lshl_add_u32 v6, v7, 1, v6
v_lshl_add_u32 v6, v{vJ}, 4, v6
s_add_u32 s{sT}, s{sKV}, {VOFF}
buffer_load_ushort v13, v6, {ws}, s{sT} offen sc1
s_branch L_h1_ret
{lhk}:
v_bfe_u32 v7, v{vJ}, 2, 1
v_and_b32 v8, 31, v5
v_lshl_add_u32 v8, v7, 5, v8
v_lshlrev_b32 v8, 4, v8
v_and_b32 v9, 3, v{vJ}
v_lshl_add_u32 v8, v9, 1, v8
v_lshl_add_u32 v9, v6, 10, v8
v_bfe_u32 v7, v{vJ}, 3, 1
v_lshl_add_u32 v9, v7, 3, v9
v_lshrrev_b32 v7, 1, v6
v_lshl_add_u32 v8, v7, 10, v8
v_and_b32 v7, 1, v6
v_lshl_add_u32 v8, v7, 3, v8
v_add_u32 v8, {K2OFF}, v8
v_cmp_lt_u32 vcc, 15, v{vJ}
s_nop 1
v_cndmask_b32 v9, v9, v8, vcc
v_and_b32 v9, -4, v9
buffer_load_dword v13, v9, {ws}, s{sKV} offen sc1
s_branch L_h1_ret
L_h2:""")
retry(range(U, U+40), hxs)
TS("xs_ready")
E("v_mov_b32 v6, 0\nv_mov_b32 v7, 0")
for k in range(10):
    E(f"{MF} v[208:223], {v(vF6+4*k,4)}, {v(U+4*k,4)}, {'0' if k == 0 else 'v[208:223]'}")
    for i in range(4*k, 4*k+4):
        E(f"v_dot2_f32_bf16 v{6+i%2}, v{U+i}, v{U+i}, v{6+i%2}")
E(f"s_add_u32 s{sSQ}, s{sSQ}, 5120\ns_nop 1\nv_add_f32 v7, v6, v7")
halfsum(7, 6)
E("v_mov_b32 v222, v7")
pwrite(208, 0, False)
E("s_nop 1")
for i in range(5): E(f"{MF} v[208:223], {v(224+4*i,4)}, {v(U+4*i,4)}, {'0' if i == 0 else 'v[208:223]'}")
sqloads()
E("s_branch L_h2_ret\nL_h3:\ns_waitcnt vmcnt(5)")
for i in range(5): E(f"{MF} v[208:223], {v(224+4*i,4)}, {v(U+20+4*i,4)}, v[208:223]")
pwrite(208, 4096)
lq_ = E.label("Lhq"); lv_ = E.label("Lhv")
E(f"""s_cmp_lg_u32 s{sW}, 0
s_cbranch_scc1 L_h3_ret
s_cmp_lt_u32 s2, 228
s_cselect_b32 s{sT}, {FPC+4096}, {FPC}
v_lshrrev_b32 v5, 3, v{vJ}
v_lshlrev_b32 v5, 8, v5
v_bfe_u32 v6, v{vJ}, 2, 1
v_lshl_add_u32 v5, v6, 7, v5
v_and_b32 v7, 3, v{vJ}
v_lshl_add_u32 v5, v7, 2, v5
v_add_u32 v5, s{sT}, v5
v_lshl_add_u32 v6, v{vH}, 4, v5
v_lshlrev_b32 v7, 4, v{vH}
v_add_u32 v7, {FPC+768}, v7""".replace(f"s_cselect_b32 s{sT}, {FPC+4096}, {FPC}", f"s_cselect_b32 s{sT}, 4096, 0\ns_add_u32 s{sT}, s{sT}, {FPC}"))
for wr in range(4):
    E(f"""ds_read_b32 v{208+wr}, v6 offset:{wr*1024}
    ds_read_b32 v{212+wr}, v5 offset:{wr*1024+32}
    ds_read_b32 v{216+wr}, v7 offset:{wr*1024}
    ds_read_b32 v{220+wr}, v7 offset:{wr*1024+8}""")
E("s_waitcnt lgkmcnt(0)")
for b in (208, 212, 216, 220):
    E(f"v_add_f32 v{b}, v{b}, v{b+1}\nv_add_f32 v{b+2}, v{b+2}, v{b+3}\nv_add_f32 v{b}, v{b}, v{b+2}")
E(f"""v_mul_f32 v216, {f2u(1.0/640)}, v216
v_mul_f32 v220, {f2u(1.0/640)}, v220
v_fma_f32 v220, -v216, v216, v220
v_max_f32 v220, 0, v220
v_add_f32 v220, {f2u(1e-5)}, v220
v_rsq_f32 v220, v220
v_fma_f32 v208, -v216, v212, v208
v_mul_f32 v208, v208, v220
s_cmp_eq_u32 s2, 232
s_cbranch_scc1 {lv_}
s_cmp_lt_u32 s2, 228
s_cselect_b32 s{sT}, {f2u(CSC)}, 1.0
v_mul_f32 v208, s{sT}, v208
s_mov_b32 s{sEX}, 0x55555555
s_mov_b32 s{sEX+1}, 0x55555555
v_mov_b32_dpp v209, v208 quad_perm:[1,0,3,2] row_mask:0xf bank_mask:0xf
s_nop 0
v_cvt_pk_bf16_f32 v208, v208, v209
s_cbranch_scc1 {lq_}
v_bfe_u32 v5, v{vJ}, 2, 1
v_lshl_add_u32 v5, v{vH}, 2, v5
v_and_b32 v6, 3, v{vJ}
v_lshlrev_b32 v6, 1, v6
v_lshl_add_u32 v7, v5, 4, v6
v_bfe_u32 v209, v{vJ}, 3, 1
v_lshl_add_u32 v7, v209, 3, v7
v_lshl_add_u32 v6, v5, 3, v6
v_add_u32 v6, 256, v6
v_cmp_lt_u32 vcc, 15, v{vJ}
v_add_u32 v5, 32, v7
v_add_u32 v209, 16, v6
v_cndmask_b32 v7, v7, v6, vcc
v_cndmask_b32 v5, v5, v209, vcc
s_mov_b32 s{sT}, {WS_SM+SM_LK1}
s_mov_b32 s{sEX}, 0x555555
s_mov_b32 s{sEX+1}, 0x555555
s_mov_b64 exec, s[{sEX}:{sEX+1}]
buffer_store_dword v13, v7, {ws}, s{sT} offen sc1
buffer_store_dword v208, v5, {ws}, s{sT} offen sc1
s_mov_b64 exec, -1
s_branch L_h3_ret
{lq_}:
v_mul_u32_u24 v5, 1280, v{vH}
v_lshl_add_u32 v5, v{vJ}, 1, v5
s_sub_u32 s{sT}, s2, 208
s_lshl_b32 s{sT}, s{sT}, 6
s_add_u32 s{sT}, s{sT}, {WS_SM+SM_QS}
s_mov_b64 exec, s[{sEX}:{sEX+1}]
buffer_store_dword v208, v5, {ws}, s{sT} offen sc1
s_mov_b64 exec, -1
s_branch L_h3_ret
{lv_}:
v_cvt_pk_bf16_f32 v208, v208, v208
v_xor_b32 v13, 0x8000, v13
v_mov_b32 v5, 0x3f80bf80
v_mov_b32 v6, 0x00003f80
v_cmp_eq_u32 vcc, 20, v{vJ}
v_lshl_or_b32 v208, v208, 16, v13
v_lshlrev_b32 v7, 3, v{vJ}
v_cndmask_b32 v208, v208, v5, vcc
v_cmp_eq_u32 vcc, 21, v{vJ}
v_lshl_add_u32 v7, v{vH}, 2, v7
s_mov_b32 s{sT}, {WS_SM+SM_LV}
v_cndmask_b32 v208, v208, v6, vcc
s_mov_b32 s{sEX}, 0x3fffff
s_mov_b32 s{sEX+1}, 0x3fffff
s_mov_b64 exec, s[{sEX}:{sEX+1}]
buffer_store_dword v208, v7, {ws}, s{sT} offen sc1
s_mov_b64 exec, -1
s_branch L_h3_ret""")
def sloads():
    E(f"""s_lshl_b32 s{sT}, s{sRB}, 5
    s_sub_u32 s{sT}, s{sI2}, s{sT}
    v_cmp_eq_u32 vcc, s{sT}, v{vJ}
    s_mul_i32 s{sT+4}, s{sCB}, 320
    s_mul_i32 s{sT+5}, s{sW}, 80
    v_cndmask_b32 v5, 0, 1, vcc
    v_mul_u32_u24 v5, 1280, v5
    v_lshl_add_u32 v7, v{vH}, 3, v5
    v_lshl_add_u32 v8, v{vH}, 4, v5
    s_add_u32 s{sT}, s{sT+4}, {WS_SM+SM_QS}
    s_lshl_b32 s{sT+1}, s{sW}, 6
    s_add_u32 s{sT+1}, s{sT+1}, s{sT}
    s_lshl_b32 s{sT+2}, s{sW}, 4
    s_add_u32 s{sT+2}, s{sT+2}, s{sT}
    s_add_u32 s{sT+4}, s{sT+4}, s{sT+5}
    s_add_u32 s{sT+4}, s{sT+4}, {WS_SM+SM_XS}
    {spx}""")
    for q in range(4): E(f"buffer_load_dwordx2 {v(168+2*q,2)}, v7, {ws}, s{sT+1} offen offset:{16*q} sc1")
    E(f"""buffer_load_dwordx2 v[176:177], v7, {ws}, s{sT+2} offen offset:256 sc1
    buffer_load_dwordx4 {v(vXR,4)}, v8, {ws}, s{sT+4} offen sc1
    buffer_load_dwordx4 {v(vXR+4,4)}, v8, {ws}, s{sT+4} offen offset:32 sc1
    buffer_load_dwordx2 {v(vXR+8,2)}, v7, {ws}, s{sT+4} offen offset:64 sc1""")
E("L_s1:")
sloads()
E("s_mov_b64 exec, -1\ns_branch L_s1_ret\nL_s2:")
E(spx)
def rl():
    E("s_mov_b64 exec, -1"); sloads()
retry(list(range(168, 178)) + list(range(vXR, vXR+10)), rl)
E(f"""s_lshl_b32 s{sT}, s{sW}, 11
s_add_u32 s{sT}, s{sT}, {QAREA}
s_lshl_b32 s{sT+1}, s{sW}, 9
s_add_u32 s{sT+1}, s{sT+1}, {QAREA+8192}
v_lshl_add_u32 v7, v{vH}, 5, v{vPI}
v_lshl_add_u32 v6, v7, 4, s{sT}
v_lshl_add_u32 v7, v7, 3, s{sT+1}
ds_write_b128 v6, v[168:171]
ds_write_b128 v6, v[172:175] offset:1024
ds_write_b64 v7, v[176:177]
s_mov_b64 exec, -1""")
TS("s2_done")
E("s_waitcnt lgkmcnt(0)\ns_barrier\ns_branch L_s2_ret")
def ltloads():
    E(f"""v_lshl_add_u32 v5, v{vJ}, 1, v{vH}
    v_lshrrev_b32 v6, 2, v{vJ}
    v_lshlrev_b32 v6, 28, v6
    v_lshl_add_u32 v7, v5, 4, v6
    v_lshl_add_u32 v8, v5, 3, v6
    v_cmp_lt_u32 vcc, 21, v{vL}
    v_lshlrev_b32 v9, 3, v{vL}
    v_mov_b32 v10, {OOB}
    s_mov_b32 s{sT}, {WS_SM+SM_LK1}
    v_cndmask_b32 v9, v9, v10, vcc
    buffer_load_dwordx4 v[168:171], v7, {ws}, s{sT} offen sc1
    buffer_load_dwordx2 v[172:173], v8, {ws}, s{sT} offen offset:256 sc1
    buffer_load_dwordx2 v[176:177], v9, {ws}, s{sT} offen offset:512 sc1""")
E("L_lt1:")
ltloads()
E(f"""s_lshl_b32 s{sT}, s{sW}, 7
s_lshl_b32 s{sT+1}, s{sW}, 6
v_add_u32 v5, s{sT}, v{vQa}
v_add_u32 v6, s{sT+1}, v{vQb}
ds_read_b128 v[180:183], v5
ds_read_b128 v[184:187], v5 offset:1024
ds_read_b64 v[188:189], v6
v_mov_b32 v178, 0
v_mov_b32 v179, 0
s_branch L_lt1_ret
L_lt2:
v_mov_b32 v190, v6
v_mov_b32 v191, v7""")
retry([168, 169, 170, 171, 172, 173, 176, 177], ltloads, pre=f"s_waitcnt vmcnt({sum(len(rel[t]) for t in (11,12,13,14,15)) - 4})")
E(f"""{MF} v[16:31], v[168:171], v[180:183], 0
{MF} v[32:47], v[168:171], v[184:187], 0
v_mov_b32 v6, v190
v_mov_b32 v7, v191
s_nop 7
v_mfma_f32_32x32x4_2b_bf16 v[16:47], v[172:173], v[188:189], v[16:47]
s_nop 15
s_nop 3""")
for b in (16, 32):
    for i in range(4): E(f"v_exp_f32 v{b+i}, v{b+i}")
E("s_nop 0")
for b, p_ in ((16, 80), (32, 88)):
    E(f"v_cvt_pk_bf16_f32 v{p_}, v{b}, v{b+1}\nv_cvt_pk_bf16_f32 v{p_+1}, v{b+2}, v{b+3}\nv_mov_b32 v{p_+2}, 0\nv_mov_b32 v{p_+3}, 0")
E(f"""s_nop 1
{MF} v[208:223], v[176:179], v[80:83], 0
{MF} v[224:239], v[176:179], v[88:91], 0
s_branch L_lt2_ret""")

NI = 0xff800000
E(f"""L_fb:
s_lshl_b32 s{sT+2}, s{sW}, 7
s_lshl_b32 s{sT+3}, s{sW}, 6
v_add_u32 v5, s{sT+2}, v{vQa}
v_add_u32 v6, s{sT+3}, v{vQb}
ds_read_b128 v[96:99], v5
ds_read_b128 v[100:103], v5 offset:1024
ds_read_b64 v[104:105], v6
v_mov_b32 v64, {NI}
v_mov_b32 v65, {NI}
v_mov_b32 v67, {NI}
v_lshlrev_b32 v66, 2, v{vH}
s_mov_b32 s{sT+2}, 0""")
for i in range(32): E(f"v_accvgpr_write_b32 a{224+i}, 0")
def fbqk(k1, k2):
    E(f"""{MF} v[16:31], {k1}, v[96:99], 0
    {MF} v[32:47], {k1}, v[100:103], 0
    s_nop 7
    s_nop 1
    v_mfma_f32_32x32x4_2b_bf16 v[16:47], {k2}, v[104:105], v[16:47]
    s_nop 15
    s_nop 3""")
def fbexp(n):
    for i in range(n): E(f"v_sub_f32 v{16+i}, v{16+i}, v64\nv_sub_f32 v{32+i}, v{32+i}, v65")
    for i in range(n): E(f"v_exp_f32 v{16+i}, v{16+i}\nv_exp_f32 v{32+i}, v{32+i}")
    for i in range(n//2): E(f"v_cvt_pk_bf16_f32 v{80+i}, v{16+2*i}, v{17+2*i}\nv_cvt_pk_bf16_f32 v{88+i}, v{32+2*i}, v{33+2*i}")
def fbmax(n):
    for i in range(0, n, 2): E(f"v_max3_f32 v64, v64, v{16+i}, v{17+i}\nv_max3_f32 v65, v65, v{32+i}, v{33+i}")
E(f"""L_fb_pass:
s_mov_b32 s{sT+3}, 0
L_fb_t:
s_lshl_b32 s{sT+4}, s{sT+3}, 10
s_add_u32 s{sT+4}, s{sT+4}, s{sKV}
s_lshr_b32 s{sT+5}, s{sT+3}, 1
s_lshl_b32 s{sT+5}, s{sT+5}, 10
s_and_b32 s{sT+6}, s{sT+3}, 1
s_lshl_b32 s{sT+6}, s{sT+6}, 3
s_add_u32 s{sT+5}, s{sT+5}, s{sT+6}
s_add_u32 s{sT+5}, s{sT+5}, s{sKV}
s_add_u32 s{sT+5}, s{sT+5}, {K2OFF}
s_mul_i32 s{sT+6}, s{sT+3}, 1344
s_add_u32 s{sT+6}, s{sT+6}, s{sKV}
s_add_u32 s{sT+6}, s{sT+6}, {VOFF}
buffer_load_dwordx4 v[48:51], v{vL16}, {ws}, s{sT+4} offen sc1
buffer_load_dwordx2 v[52:53], v{vL16}, {ws}, s{sT+5} offen sc1
buffer_load_dwordx4 v[56:59], v{vVO}, {ws}, s{sT+6} offen sc1
buffer_load_dwordx4 v[60:63], v{vVO}, {ws}, s{sT+6} offen offset:672 sc1
s_waitcnt vmcnt(0) lgkmcnt(0)""")
fbqk("v[48:51]", "v[52:53]")
E(f"""s_bitcmp0_b32 s{sROLE}, 3
s_cbranch_scc1 L_fb_nm
s_lshl_b32 s{sT+4}, s{sT+3}, 5
s_sub_u32 s{sT+5}, s{sI1}, s{sT+4}
s_sub_u32 s{sT+6}, s{sI2}, s{sT+4}
s_min_u32 s{sT+4}, s{sT+5}, s{sT+6}
s_cmp_ge_u32 s{sT+4}, 32
s_cbranch_scc1 L_fb_nm""")
for r in range(16):
    E(f"""v_add_u32 v5, {8*(r>>2) + (r&3)}, v66
    v_cmp_eq_u32 vcc, s{sT+5}, v5
    v_cmp_eq_u32 s[{sEX}:{sEX+1}], s{sT+6}, v5
    s_nop 3
    s_or_b64 vcc, vcc, s[{sEX}:{sEX+1}]
    v_cndmask_b32 v{16+r}, v{16+r}, v67, vcc
    v_cndmask_b32 v{32+r}, v{32+r}, v67, vcc""")
E(f"""L_fb_nm:
s_cmp_lg_u32 s{sT+2}, 0
s_cbranch_scc1 L_fb_p2""")
fbmax(16)
E("s_branch L_fb_n\nL_fb_p2:")
fbexp(16)
E(f"""s_nop 1
{MF} a[224:239], v[56:59], v[80:83], a[224:239]
{MF} a[240:255], v[56:59], v[88:91], a[240:255]
{MF} a[224:239], v[60:63], v[84:87], a[224:239]
{MF} a[240:255], v[60:63], v[92:95], a[240:255]
L_fb_n:
s_add_u32 s{sT+3}, s{sT+3}, 1
s_cmp_lt_u32 s{sT+3}, 64
s_cbranch_scc1 L_fb_t
s_bitcmp0_b32 s{sROLE}, 3
s_cbranch_scc1 L_fb_nl""")
fbqk("v[168:171]", "v[172:173]")
E(f"""v_cmp_eq_u32 vcc, 1, v{vH}
v_mov_b32 v16, v67
v_mov_b32 v18, v67
v_mov_b32 v32, v67
v_mov_b32 v34, v67
v_cndmask_b32 v17, v17, v67, vcc
v_cndmask_b32 v19, v19, v67, vcc
v_cndmask_b32 v33, v33, v67, vcc
v_cndmask_b32 v35, v35, v67, vcc
s_cmp_lg_u32 s{sT+2}, 0
s_cbranch_scc1 L_fb_l2""")
fbmax(4)
E("s_branch L_fb_nl\nL_fb_l2:")
fbexp(4)
E(f"""v_mov_b32 v82, 0
v_mov_b32 v83, 0
v_mov_b32 v90, 0
v_mov_b32 v91, 0
s_nop 1
{MF} a[224:239], v[176:179], v[80:83], a[224:239]
{MF} a[240:255], v[176:179], v[88:91], a[240:255]
L_fb_nl:
s_cmp_lg_u32 s{sT+2}, 0
s_cbranch_scc1 L_fb_end
s_mov_b32 s{sT+2}, 1
v_mov_b32 v5, v64
v_mov_b32 v6, v65
s_nop 1
v_permlane32_swap_b32 v64, v5
v_permlane32_swap_b32 v65, v6
s_nop 0
v_max_f32 v64, v64, v5
v_max_f32 v65, v65, v6
s_branch L_fb_pass
L_fb_end:
s_nop 15""")
for i in range(12): E(f"v_accvgpr_read_b32 v{16+i}, a{224+i}\nv_accvgpr_read_b32 v{28+i}, a{240+i}")
E("""v_mov_b32 v5, v24
v_mov_b32 v6, v24
v_mov_b32 v7, v36
v_mov_b32 v8, v36
s_nop 1
s_branch L_fb_ret""")
E("L_wqf:")
for k in range(10):
    l = E.label("Lfs")
    E(f"s_cmp_lg_u32 s{sRB}, {k}\ns_cbranch_scc1 {l}")
    for g in range(4):
        E(f"""s_add_u32 s{sT}, s{sW}, {g}
        s_and_b32 s{sT}, s{sT}, 3
        s_mul_i32 s{sT}, s{sT}, 10240
        s_add_u32 s{sT}, s{sT}, s{sT+8}
        buffer_store_dwordx4 {a(4*(10*g+k),4)}, v{vL16}, {ws}, s{sT} offen sc1""")
    E(f"""s_mul_i32 s{sT}, s{sW}, {10240-40960}
    s_add_u32 s{sT}, s{sT}, s{sT+8}
    s_add_u32 s{sT}, s{sT}, 163840
    buffer_store_dwordx4 {v(vF4+4*k,4)}, v{vL16}, {ws}, s{sT} offen sc1""")
    E(f"s_branch L_wqf_ret\n{l}:")
E("s_branch L_wqf_ret")
E(f"""L_loc:
s_lshl_b32 s{sT+2}, s{sRB}, 8
s_add_u32 s{sT+2}, s{sT+2}, {WS_FL+0x10000}
s_lshr_b32 s{sT+3}, s{sLOC}, 4
s_mov_b32 s{sT+11}, 0x80000
s_waitcnt vmcnt(7)
L_h10s:
v_lshrrev_b32 v5, 4, v13
v_cmp_ne_u32 vcc, s{sT+3}, v5
s_sub_u32 s{sT+11}, s{sT+11}, 1
s_cbranch_scc1 L_h10t
s_nop 2
s_cbranch_vccz L_h10t
v_and_b32 v6, 3, v{vL}
v_lshlrev_b32 v6, 6, v6
buffer_load_dword v13, v6, {ws}, s{sT+2} offen sc1
s_waitcnt vmcnt(0)
s_branch L_h10s
L_h10t:
v_cmp_ne_u32 vcc, s{sLOC}, v13
s_nop 3
s_cmp_eq_u64 vcc, 0
s_cselect_b32 s{sLOC}, 1, 0
s_branch L_loc_ret
L_hook10:
v_bfe_u32 v5, v{vL}, 2, 2
v_lshl_add_u32 v5, v{vH}, 3, v5
v_lshlrev_b32 v5, 6, v5
v_bfe_u32 v6, v{vL}, 4, 1
v_and_b32 v7, 3, v{vL}
v_lshrrev_b32 v8, 1, v7
v_and_b32 v9, 1, v7
v_lshl_add_u32 v8, v9, 1, v8
s_cmp_eq_u32 s{sTT}, 4
s_cselect_b64 vcc, -1, 0
s_mul_i32 s{sT}, s{sW}, {PREG}
s_add_u32 s{sT}, s{sT}, {WOPREP}
v_cndmask_b32 v7, v8, v7, vcc
v_lshl_add_u32 v7, v6, 2, v7
v_lshl_add_u32 v5, v7, 3, v5
v_add_u32 v5, s{sT}, v5
ds_read_b64_tr_b16 v[208:209], v5
ds_read_b64_tr_b16 v[210:211], v5 offset:256
v_mov_b32 v8, -1
v_mov_b32 v9, -1
v_mov_b32 v10, -1
v_mov_b32 v11, -1
s_mul_i32 s{sT}, s{sG}, 384
s_add_u32 s{sT}, s{sT}, {WS_SM}
s_mov_b64 exec, 0xffffff
buffer_store_dwordx4 v[8:11], v{vL16}, {ws}, s{sT} offen sc1
s_mov_b64 exec, -1
s_lshl_b32 s{sT}, s{sG}, 10
s_add_u32 s{sT}, s{sT}, {WS_WOF}
s_cmp_ge_u32 s{sG}, 800
s_cselect_b32 s{sT}, {OOB}, s{sT}
s_waitcnt lgkmcnt(0)
buffer_store_dwordx4 v[208:211], v{vL16}, {ws}, s{sT} offen sc1""")
segoffs(WS_WOF, 204800)
E(f"""s_branch L_hook10_ret
L_idle:
s_cmp_eq_u32 s{sLAY}, 0
s_cbranch_scc1 L_h28a
s_mov_b32 s{WG+2}, 0
s_mov_b32 s{T2+2}, 0
s_mov_b32 m0, {LDS_BYTES}""")
uinit()
E(f"""s_branch L_idle_ret
L_hook28:
s_lshl_b32 s{sT}, s2, 6
s_add_u32 s{sT}, s{sT}, s{sFLK}
s_add_u32 s{sT}, s{sT}, 0x8000""")
signal(sT)
E(f"""s_branch L_hookret28
L_h28a:
s_mul_i32 s{sT+1}, s{sW}, 10240
s_add_u32 m0, s{sT+1}, {FFNW}
s_mov_b32 s{sT+2}, 108
s_cmp_ge_u32 s2, 128
s_cbranch_scc1 L_h28d
s_cmp_lt_u32 s2, s{sT+2}
s_cselect_b32 s{WG+2}, 2211840, 0
s_mov_b32 s{sD5+1}, 0
s_mov_b32 s{WG}, s{pG}
s_mov_b32 s{WG+1}, s{pG+1}
s_mov_b32 s{WG+3}, 0x20000
s_mov_b32 s{T2}, s{pU}
s_mov_b32 s{T2+1}, s{pU+1}
s_mov_b32 s{T2+2}, s{WG+2}
s_mov_b32 s{T2+3}, 0x20000
s_mul_i32 s{sDS}, s{sW}, {160*3456}
s_lshl_b32 s{sT+1}, s2, 5
s_add_u32 s{sDS}, s{sDS}, s{sT+1}
s_mov_b32 s{sD5}, s{sDS}
s_mov_b32 s{sDT}, 110592
v_lshrrev_b32 v12, 1, v{vL}
v_mul_u32_u24 v12, 3456, v12
v_and_b32 v6, 1, v{vL}
v_lshl_add_u32 v12, v6, 4, v12
s_branch L_idle_ret
L_h28d:
s_add_u32 s{sT+2}, s{sT+2}, 100
s_cmp_lt_u32 s2, s{sT+2}
s_cselect_b32 s{WG+2}, 2211840, 0
s_mov_b32 s{sD5+1}, {OOB}
s_mov_b32 s{WG}, s{pD}
s_mov_b32 s{WG+1}, s{pD+1}
s_mov_b32 s{WG+3}, 0x20000
s_mov_b32 s{T2}, s{pD}
s_mov_b32 s{T2+1}, s{pD+1}
s_mov_b32 s{T2+2}, s{WG+2}
s_mov_b32 s{T2+3}, 0x20000
s_sub_u32 s{sT}, s2, 128
s_lshl_b32 s{sT}, s{sT}, 4
s_mul_i32 s{sDS}, s{sW}, {7*81920}
s_add_u32 s{sDS}, s{sDS}, s{sT}
s_add_u32 s{sD5}, s{sDS}, {5*81920}
s_mov_b32 s{sDT}, 81920
v_mul_u32_u24 v12, 1280, v{vL}
s_branch L_idle_ret
L_hook47:
s_mov_b32 s{sT+11}, 0x80000
L_h46a:
v_cmp_ne_u32 vcc, 0, v8
s_sub_u32 s{sT+11}, s{sT+11}, 1
s_cbranch_scc1 L_h46b
s_nop 2
s_cbranch_vccz L_h46b""")
flagloads(0x8000)
flagcheck()
E(f"""s_branch L_h46a
L_h46b:
s_cmp_lg_u32 s{sLAY}, 0
s_cbranch_scc1 L_hookret47
s_or_b32 s{sT}, s2, s{sW}
s_cmp_eq_u32 s{sT}, 0
s_cselect_b32 s{sT}, 0, {OOB}""")
signal(sT)
qseg()
for i in range(NPRE): E(wfrag_load(v(vWP+4*i, 4), 10+i, sT))
E(f"""s_branch L_hookret47
L_codeend:
.section .rodata,"a"
.p2align 6
.amdhsa_kernel {NAME}_kernel
.amdhsa_next_free_vgpr 512
.amdhsa_next_free_sgpr 102
.amdhsa_accum_offset 256
.amdhsa_group_segment_fixed_size 0
.amdhsa_kernarg_size 104
.amdhsa_user_sgpr_count 2
.amdhsa_user_sgpr_kernarg_segment_ptr 1
.amdhsa_system_sgpr_workgroup_id_x 1
.end_amdhsa_kernel""")
open(sys.argv[1], "w").write(E.text())
open(sys.argv[1] + ".ts", "w").write("\n".join(TSN))
```
